```python
import torch

def _softmax(x, axis=-1):
    return torch.softmax(x, dim=axis)

def _gelu(x):
    return torch.nn.functional.gelu(x, approximate='tanh')

def _silu(x):
    return torch.nn.functional.silu(x)

def _sigmoid(x):
    return torch.sigmoid(x)

def _layernorm(x, axis=-1, eps=1e-05):
    m = x.mean(dim=axis, keepdim=True)
    v = x.var(dim=axis, keepdim=True, unbiased=False)
    return (x - m) / torch.sqrt(v + eps)

def _scatter_add(tgt, idx, src, axis=0):
    return tgt.clone().index_add_(axis, idx, src)

def _segment_sum(src, seg, n):
    out = torch.zeros((n,) + src.shape[1:], dtype=src.dtype)
    return out.index_add_(0, seg, src)

def _pad(x, pw):
    flat = tuple((v for pair in reversed(pw) for v in pair))
    return torch.nn.functional.pad(x, flat)
kernel_name = 'parallel_sum__linear_attn_block__mixer_gmlp__prompt'

def setup_inputs():

    _w = lambda a: (lambda t: t.to(torch.bfloat16) if t.is_floating_point() else t)(torch.as_tensor(a))

    def _A_setup():
        B, S, D = (1, 2048, 640)
        return {'x': _w((lambda *s: torch.randn(*s, dtype=torch.bfloat16) * 0.05)(B, S, D)), 'wqkv': _w((lambda *s: torch.randn(*s, dtype=torch.bfloat16) * 0.8)(D, 3 * D)), 'wo': _w((lambda *s: torch.randn(*s, dtype=torch.bfloat16) * 0.2)(D, D))}
    _A_in = _A_setup()

    def _B_setup():
        B, S, D, F = (1, 2048, 640, 1536)
        Fh = F // 2
        return {'x': _w((lambda *s: torch.randn(*s, dtype=torch.bfloat16) * 0.05)(B, S, D)), 'w_in': _w((lambda *s: torch.randn(*s, dtype=torch.bfloat16) * 0.4)(D, 2 * Fh)), 'w_sp': _w(0.01 * (lambda *s: torch.randn(*s, dtype=torch.bfloat16) * 0.4)(S, S)), 'b_sp': _w(1.0 + 0.01 * (lambda *s: torch.randn(*s, dtype=torch.bfloat16) * 0.05)(S)), 'w_out': _w((lambda *s: torch.randn(*s, dtype=torch.bfloat16) * 0.05)(Fh, D))}
    _B_in = _B_setup()
    return {'A_x': _A_in['x'], 'A_wqkv': _A_in['wqkv'], 'A_wo': _A_in['wo'], 'B_x': _B_in['x'], 'B_w_in': _B_in['w_in'], 'B_w_sp': _B_in['w_sp'], 'B_b_sp': _B_in['b_sp'], 'B_w_out': _B_in['w_out']}

def reference(A_x, A_wqkv, A_wo, B_x, B_w_in, B_w_sp, B_b_sp, B_w_out):

    def _A_ref(x, wqkv, wo):
        B, S, D = x.shape
        H = 32
        Dh = D // H
        qkv = (lambda x, *d: x.permute(*d))((x @ wqkv).reshape(B, S, 3, H, Dh), 2, 0, 3, 1, 4)
        q, k, v = (qkv[0], qkv[1], qkv[2])
        phi = lambda t: torch.where(t > 0, t + 1, torch.exp(t)) + 1e-06
        pq, pk = (phi(q), phi(k))
        kv = torch.einsum('bhsd,bhse->bhde', pk, v)
        z = torch.einsum('bhsd->bhd', pk)
        num = torch.einsum('bhqd,bhde->bhqe', pq, kv)
        den = torch.einsum('bhqd,bhd->bhq', pq, z)[..., None] + 1e-06
        o = num / den
        return (lambda x, *d: x.permute(*d))(o, 0, 2, 1, 3).reshape(B, S, D) @ wo

    def _B_ref(x, w_in, w_sp, b_sp, w_out):
        B, S, D = x.shape
        F = w_in.shape[-1]
        Fh = F // 2
        z = _gelu(torch.einsum('bsd,df->bsf', x, w_in))
        z1 = z[..., :Fh].clone()
        z2 = _layernorm(z[..., Fh:], axis=-1)
        g = torch.einsum('ts,bsf->btf', w_sp, z2) + b_sp[None, :, None]
        return torch.einsum('bsf,fd->bsd', z1 * g, w_out)
    x = A_x
    xn = _layernorm(x, axis=-1)
    return x + _A_ref(xn, A_wqkv, A_wo) + _B_ref(xn, B_w_in, B_w_sp, B_b_sp, B_w_out)
```

```python
class Asm:
    def __init__(self):
        self.lines = []
        self.lab = 0
    def __call__(self, s):
        self.lines.append("    " + s)
    def raw(self, s):
        self.lines.append(s)
    def label(self, name):
        self.lines.append(name + ":")
    def newlabel(self, pfx="L"):
        self.lab += 1
        return f"{pfx}_{self.lab}"
    def nop(self, n):
        while n > 0:
            k = min(n, 16)
            self(f"s_nop {k-1}")
            n -= k
    def text(self):
        return "\n".join(self.lines) + "\n"

def v(i, n=1):
    return f"v{i}" if n == 1 else f"v[{i}:{i+n-1}]"
def s(i, n=1):
    return f"s{i}" if n == 1 else f"s[{i}:{i+n-1}]"

WS_PQ  = 0x0
WS_PKT = 0x280000
WS_VT  = 0x500000
WS_Z1  = 0x780000
WS_Z2F = 0xA80000
WS_ST  = 0xD80000
WS_ACT = 0xDC0000
WS_WCT = 0x1340000
WS_END = 0x14F8000

KA_X, KA_WQKV, KA_WO, KA_BX, KA_WIN, KA_WSP, KA_BSP, KA_WOUT, KA_OUT, KA_DBG, KA_WS = [8*i for i in range(11)]

def srd(a, sd, sptr, nbytes):
    a(f"s_mov_b32 {s(sd)}, {s(sptr)}")
    a(f"s_and_b32 {s(sd+1)}, {s(sptr+1)}, 0xffff")
    a(f"s_mov_b32 {s(sd+2)}, {nbytes}")
    a(f"s_mov_b32 {s(sd+3)}, 0x00020000")

def kernel_desc(name, vgpr, sgpr=102, accum=None):
    if accum is None:
        accum = (vgpr + 3)//4*4
    return f""".section .rodata,"a"
.p2align 6
.amdhsa_kernel {name}
  .amdhsa_next_free_vgpr {vgpr}
  .amdhsa_next_free_sgpr {sgpr}
  .amdhsa_accum_offset {accum}
  .amdhsa_group_segment_fixed_size 0
  .amdhsa_kernarg_size 88
  .amdhsa_user_sgpr_count 2
  .amdhsa_user_sgpr_kernarg_segment_ptr 1
  .amdhsa_system_sgpr_workgroup_id_x 1
.end_amdhsa_kernel
.text
"""
import struct
def f32bits(x):
    return "0x%08x" % struct.unpack("<I", struct.pack("<f", x))[0]
```

```python
from common import *

LOG2E = 1.4426950408889634
GA = -2.0*0.7978845608028654*LOG2E
GB = GA*0.044715

def gelu4(a, xs, ts, sB, vA):
    for x,t in zip(xs,ts): a(f"v_mul_f32 {v(t)}, {v(x)}, {v(x)}")
    for x,t in zip(xs,ts): a(f"v_fma_f32 {v(t)}, {v(t)}, {s(sB)}, {v(vA)}")
    for x,t in zip(xs,ts): a(f"v_mul_f32 {v(t)}, {v(t)}, {v(x)}")
    for x,t in zip(xs,ts): a(f"v_exp_f32 {v(t)}, {v(t)}")
    for x,t in zip(xs,ts): a(f"v_add_f32 {v(t)}, 1.0, {v(t)}")
    for x,t in zip(xs,ts): a(f"v_rcp_f32 {v(t)}, {v(t)}")
    for x,t in zip(xs,ts): a(f"v_mul_f32 {v(x)}, {v(x)}, {v(t)}")

def phi4(a, xs, ts, sL, sEps):
    for x,t in zip(xs,ts): a(f"v_mul_f32 {v(t)}, {s(sL)}, {v(x)}")
    for x,t in zip(xs,ts): a(f"v_min_f32 {v(t)}, 0, {v(t)}")
    for x,t in zip(xs,ts): a(f"v_exp_f32 {v(t)}, {v(t)}")
    for x,t in zip(xs,ts): a(f"v_max_f32 {v(x)}, 0, {v(x)}")
    for x,t in zip(xs,ts): a(f"v_add_f32 {v(x)}, {s(sEps)}, {v(x)}")
    for x,t in zip(xs,ts): a(f"v_add_f32 {v(x)}, {v(x)}, {v(t)}")

def dpp_red16(a, regs):
    for rot in (8,4,2,1):
        for r in regs:
            a(f"v_add_f32_dpp {v(r)}, {v(r)}, {v(r)} row_ror:{rot} row_mask:0xf bank_mask:0xf")
        if len(regs) < 3:
            a.nop(2)

def gen_k1(a):
    a.raw(".globl k1_kernel"); a.raw(".p2align 8"); a.raw(".type k1_kernel,@function"); a.label("k1_kernel")
    a("s_cmp_ge_u32 s2, 256"); a("s_cbranch_scc1 K1_END")
    a(f"s_load_dwordx2 s[4:5], s[0:1], {KA_X}")
    a(f"s_load_dwordx2 s[6:7], s[0:1], {KA_WQKV}")
    a(f"s_load_dwordx2 s[8:9], s[0:1], {KA_WIN}")
    a(f"s_load_dwordx2 s[10:11], s[0:1], {KA_WS}")
    VLANE, VC, VG = 1, 2, 3
    WOFF = 8
    XAD = 16
    FR = 20
    XF = 36
    RAW = 128
    ACC = 192
    sRB, sCG, sW, sB, sCNT, sPITCH, sWOFF, sSEL0, sSEL1, sSTEP = 24,25,26,27,28,29,30,31,32,33
    a(f"s_and_b32 {s(sCG)}, s2, 7")
    a(f"s_lshr_b32 {s(sRB)}, s2, 3")
    a(f"v_lshrrev_b32 v4, 6, v0")
    a(f"v_and_b32 {v(VLANE)}, 63, v0")
    a(f"v_and_b32 {v(VC)}, 15, v0")
    a(f"v_readfirstlane_b32 {s(sW)}, v4")
    a(f"v_lshrrev_b32 {v(VG)}, 4, {v(VLANE)}")
    a(f"s_mul_i32 {s(sB)}, {s(sCG)}, 7")
    a(f"s_mul_i32 {s(sCNT)}, {s(sCG)}, 6")
    a(f"s_add_u32 {s(sCNT)}, {s(sCNT)}, 6")
    a(f"s_cmp_lt_u32 {s(sCG)}, 6")
    a(f"s_cselect_b32 {s(sB)}, {s(sB)}, {s(sCNT)}")
    a(f"s_cselect_b32 {s(sCNT)}, 7, 6")
    a(f"s_add_u32 {s(sB)}, {s(sB)}, {s(sW)}")
    a(f"s_mov_b32 {s(sSEL0)}, 0x05040100")
    a(f"s_mov_b32 {s(sSEL1)}, 0x07060302")
    a("s_waitcnt lgkmcnt(0)")
    srd(a, 12, 4, 2048*1280)
    srd(a, 20, 10, WS_END)
    a(f"s_sub_u32 s34, {s(sB)}, 30")
    a(f"s_and_b32 s7, s7, 0xffff")
    a(f"s_and_b32 s9, s9, 0xffff")
    a(f"s_cmp_lt_u32 {s(sB)}, 30")
    a(f"s_cselect_b32 s16, s6, s8")
    a(f"s_cselect_b32 s17, s7, s9")
    a(f"s_mov_b32 s18, {640*3072}")
    a(f"s_cselect_b32 s18, {640*3840}, s18")
    a(f"s_mov_b32 s19, 0x00020000")
    a(f"s_movk_i32 {s(sPITCH)}, 3072")
    a(f"s_cselect_b32 {s(sPITCH)}, 3840, {s(sPITCH)}")
    a(f"s_cselect_b32 s34, {s(sB)}, s34")
    a(f"s_lshl_b32 {s(sWOFF)}, s34, 7")
    a(f"s_lshl_b32 {s(sSTEP)}, {s(sPITCH)}, 5")
    X0, X1 = 40, 60
    a(f"s_lshl_b32 s35, {s(sRB)}, 6")
    a(f"s_lshl_b32 s36, {s(sW)}, 3")
    a(f"s_add_u32 s35, s35, s36")
    a(f"v_add_u32 v4, s35, {v(VG)}")
    a(f"v_mul_u32_u24 v4, 1280, v4")
    a(f"v_lshl_add_u32 v4, {v(VC)}, 4, v4")
    for p,X in ((0,X0),(1,X1)):
        for i in range(5):
            off = p*4*1280 + i*256
            if off < 4096:
                a(f"buffer_load_dwordx4 {v(X+4*i,4)}, v4, s[12:15], 0 offen offset:{off}")
            else:
                a(f"s_movk_i32 s37, {p*4*1280}")
                a(f"buffer_load_dwordx4 {v(X+4*i,4)}, v4, s[12:15], s37 offen offset:{i*256}")
    a(f"v_mov_b32 v5, {s(sPITCH)}")
    a(f"v_lshlrev_b32 v6, 3, {v(VG)}")
    a(f"v_mul_lo_u32 v6, v6, v5")
    a(f"v_lshl_add_u32 {v(WOFF)}, {v(VC)}, 3, v6")
    for j in range(1,8):
        a(f"v_add_u32 {v(WOFF+j)}, {s(sPITCH)}, {v(WOFF+j-1)}")
    a(f"s_cmp_ge_u32 {s(sW)}, {s(sCNT)}")
    a("s_cbranch_scc1 K1_NOPF")
    def wloads(t):
        buf = RAW + 16*(t%4)
        for j in range(8):
            a(f"buffer_load_dwordx2 {v(buf+2*j,2)}, {v(WOFF+j)}, s[16:19], {s(sWOFF)} offen")
        a(f"s_add_u32 {s(sWOFF)}, {s(sWOFF)}, {s(sSTEP)}")
    for t in range(4): wloads(t)
    a.label("K1_NOPF")
    a(f"s_cmp_ge_u32 {s(sW)}, {s(sCNT)}")
    a("s_cbranch_scc0 K1_W32")
    a("s_waitcnt vmcnt(0)")
    a.label("K1_W32")
    a("s_waitcnt vmcnt(32)")
    D0, D1 = 80, 120
    SUM0, SUM1 = 20, 21
    a(f"s_mov_b32 s37, 0x3f803f80")
    a(f"v_mov_b32 {v(SUM0)}, 0"); a(f"v_mov_b32 {v(SUM1)}, 0")
    a(f"v_mov_b32 v22, 0"); a(f"v_mov_b32 v23, 0")
    for i in range(0,20,2):
        a(f"v_dot2_f32_bf16 {v(SUM0)}, {v(X0+i)}, s37, {v(SUM0)}")
        a(f"v_dot2_f32_bf16 {v(SUM1)}, {v(X1+i)}, s37, {v(SUM1)}")
        a(f"v_dot2_f32_bf16 v22, {v(X0+i+1)}, s37, v22")
        a(f"v_dot2_f32_bf16 v23, {v(X1+i+1)}, s37, v23")
    a.nop(3)
    a(f"v_add_f32 {v(SUM0)}, {v(SUM0)}, v22")
    a(f"v_add_f32 {v(SUM1)}, {v(SUM1)}, v23")
    a.nop(2)
    dpp_red16(a, [SUM0, SUM1])
    a(f"s_mov_b32 s38, {f32bits(1.0/640)}")
    a(f"v_mul_f32 {v(SUM0)}, s38, {v(SUM0)}")
    a(f"v_mul_f32 {v(SUM1)}, s38, {v(SUM1)}")
    a(f"s_mov_b32 s39, 0xffff0000")
    a(f"s_mov_b32 s40, {f32bits(1e-5)}")
    a(f"s_lshr_b32 s41, {s(sW)}, 1")
    a(f"s_lshl_b32 s41, s41, 2")
    a(f"v_or_b32 v24, s41, {v(VG)}")
    a(f"v_xor_b32 v24, v24, {v(VC)}")
    a(f"v_lshlrev_b32 v24, 4, v24")
    a(f"v_add_u32 v25, s36, {v(VG)}")
    a(f"v_mul_u32_u24 v25, 1280, v25")
    a(f"v_add_u32 v24, v24, v25")
    for p,X,SM in ((0,X0,SUM0),(1,X1,SUM1)):
        D = 80
        for i in range(20):
            a(f"v_lshlrev_b32 {v(D+2*i)}, 16, {v(X+i)}")
            a(f"v_and_b32 {v(D+2*i+1)}, s39, {v(X+i)}")
        for i in range(40):
            a(f"v_sub_f32 {v(D+i)}, {v(D+i)}, {v(SM)}")
        for k in range(4): a(f"v_mul_f32 v{26+k}, {v(D+k)}, {v(D+k)}")
        for i in range(4,40):
            a(f"v_fmac_f32 v{26+i%4}, {v(D+i)}, {v(D+i)}")
        a("v_add_f32 v26, v26, v27"); a("v_add_f32 v28, v28, v29")
        a("v_add_f32 v26, v26, v28")
        a.nop(2)
        dpp_red16(a, [26])
        a(f"v_fma_f32 v26, v26, s38, v26") if False else None
        a(f"v_mul_f32 v26, s38, v26")
        a(f"v_add_f32 v26, s40, v26")
        a(f"v_rsq_f32 v26, v26")
        a.nop(1)
        for i in range(40):
            a(f"v_mul_f32 {v(D+i)}, {v(D+i)}, v26")
        for i in range(20):
            a(f"v_cvt_pk_bf16_f32 {v(X+i)}, {v(D+2*i)}, {v(D+2*i+1)}")
        for i in range(5):
            a(f"ds_write_b128 v24, {v(X+4*i,4)} offset:{p*4*1280+i*256}")
    a("s_waitcnt lgkmcnt(0)")
    a("s_barrier")
    a(f"s_cmp_ge_u32 {s(sW)}, {s(sCNT)}")
    a("s_cbranch_scc1 K1_END")
    a(f"v_lshrrev_b32 v4, 2, {v(VC)}")
    a(f"v_lshlrev_b32 v4, 4, v4")
    a(f"v_and_b32 v5, 3, {v(VC)}")
    a(f"v_add_u32 v4, v4, v5")
    a(f"v_mul_u32_u24 v4, 1280, v4")
    for tt in range(4):
        a(f"v_add_u32 v5, {4*tt}, {v(VG)}")
        a(f"v_xor_b32 v5, v5, {v(VC)}")
        a(f"v_lshl_add_u32 {v(XAD+tt)}, v5, 4, v4")
    def xreads(t):
        buf = XF + 16*(t%2)
        for q in range(4):
            a(f"ds_read_b128 {v(buf+4*q,4)}, {v(XAD+t%4)} offset:{q*5120+(t>>2)*256}")
    a(f"s_cmp_lt_u32 {s(sB)}, 10"); a("s_cbranch_scc1 K1_MAIN_N")
    a(f"s_cmp_lt_u32 {s(sB)}, 30"); a("s_cbranch_scc1 K1_MAIN_T")
    a(f"s_cmp_lt_u32 {s(sB)}, 42"); a("s_cbranch_scc1 K1_MAIN_N")
    a("s_branch K1_MAIN_T")
    def mainloop(orient):
        xreads(0)
        for t in range(20):
            nout = min(4, 20-t)
            a(f"s_waitcnt vmcnt({8*(nout-1)})")
            raw = RAW + 16*(t%4)
            def perm(f, d):
                sel = sSEL0 if (f&1)==0 else sSEL1
                a(f"v_perm_b32 {v(FR+4*f+d)}, {v(raw+2*(2*d+1)+(f>>1))}, {v(raw+2*(2*d)+(f>>1))}, {s(sel)}")
            for d in range(4): perm(0,d)
            if t+1 < 20: xreads(t+1)
            a(f"s_waitcnt lgkmcnt({4 if t+1<20 else 0})")
            if t+1 >= 20: a.nop(2)
            xb = XF + 16*(t%2)
            for f in range(4):
                for q in range(4):
                    acc = ACC + 4*(4*f+q)
                    c = "0" if t==0 else v(acc,4)
                    if orient == 'N':
                        a(f"v_mfma_f32_16x16x32_bf16 {v(acc,4)}, {v(FR+4*f,4)}, {v(xb+4*q,4)}, {c}")
                    else:
                        a(f"v_mfma_f32_16x16x32_bf16 {v(acc,4)}, {v(xb+4*q,4)}, {v(FR+4*f,4)}, {c}")
                    if f < 3 and q < 2:
                        perm(f+1, 2*q); perm(f+1, 2*q+1)
            if t+4 < 20: wloads(t+4)
        a.nop(10)
    sL, sEPS, sGB = 40, 41, 42
    VGA = 4
    def consts():
        a(f"s_mov_b32 {s(sL)}, {f32bits(LOG2E)}")
        a(f"s_mov_b32 {s(sEPS)}, {f32bits(1e-6)}")
        a(f"s_mov_b32 {s(sGB)}, {f32bits(GB)}")
        a(f"v_mov_b32 {v(VGA)}, {f32bits(GA)}")
    TMP = 20
    PK = 36
    a.label("K1_MAIN_N")
    mainloop('N')
    consts()
    a(f"s_cmp_lt_u32 {s(sB)}, 10")
    a(f"s_movk_i32 s43, 1536")
    a(f"s_cselect_b32 s43, 1280, s43")
    a(f"s_cselect_b32 s44, {WS_PQ}, {WS_Z1}")
    a(f"s_lshl_b32 s45, s34, 7")
    a(f"s_add_u32 s44, s44, s45")
    a(f"v_lshrrev_b32 v5, 2, {v(VC)}")
    a(f"v_lshlrev_b32 v5, 4, v5")
    a(f"v_and_b32 v6, 3, {v(VC)}")
    a(f"v_add_u32 v5, v5, v6")
    a(f"s_lshl_b32 s45, {s(sRB)}, 6")
    a(f"v_add_u32 v5, s45, v5")
    a(f"v_mul_lo_u32 v5, v5, s43")
    a(f"v_lshl_add_u32 v5, {v(VG)}, 5, v5")
    a(f"s_lshl_b32 s43, s43, 2")
    a(f"s_cmp_lt_u32 {s(sB)}, 10")
    a("s_cbranch_scc0 K1_EPI_Z1")
    def epiN(kind):
        for q in range(4):
            for f in range(4):
                xs = [ACC+4*(4*f+q)+r for r in range(4)]
                ts = [TMP+4*f+r for r in range(4)]
                if kind=='q': phi4(a, xs, ts, sL, sEPS)
                else: gelu4(a, xs, ts, sGB, VGA)
            pk = PK + 8*(q%2)
            for r in range(4):
                for h in range(2):
                    a(f"v_cvt_pk_bf16_f32 {v(pk+2*r+h)}, {v(ACC+4*(4*(2*h)+q)+r)}, {v(ACC+4*(4*(2*h+1)+q)+r)}")
            a(f"buffer_store_dwordx4 {v(pk,4)}, v5, s[20:23], s44 offen")
            a(f"buffer_store_dwordx4 {v(pk+4,4)}, v5, s[20:23], s44 offen offset:16")
            if q<3: a(f"s_add_u32 s44, s44, s43")
    epiN('q')
    a("s_endpgm")
    a.label("K1_EPI_Z1")
    epiN('z1')
    a("s_endpgm")
    a.label("K1_MAIN_T")
    mainloop('T')
    consts()
    a(f"s_cmp_ge_u32 {s(sB)}, 42")
    a("s_cbranch_scc1 K1_EPI_Z2")
    a(f"s_sub_u32 s43, {s(sB)}, 10")
    a(f"s_lshl_b32 s43, s43, 18")
    a(f"s_add_u32 s43, s43, {WS_PKT}")
    a(f"s_lshl_b32 s44, {s(sRB)}, 7")
    a(f"s_add_u32 s43, s43, s44")
    a(f"v_lshlrev_b32 v5, 14, {v(VC)}")
    a(f"v_lshl_add_u32 v5, {v(VG)}, 5, v5")
    a(f"s_cmp_lt_u32 {s(sB)}, 20")
    a("s_cbranch_scc0 K1_EPI_V")
    def packT(f, pk):
        for q in range(4):
            for h in range(2):
                a(f"v_cvt_pk_bf16_f32 {v(pk+2*q+h)}, {v(ACC+4*(4*f+q)+2*h)}, {v(ACC+4*(4*f+q)+2*h+1)}")
    def epiKV(kind):
        for f in range(4):
            if kind=='k':
                for q in range(4):
                    xs = [ACC+4*(4*f+q)+r for r in range(4)]
                    ts = [TMP+4*q+r for r in range(4)]
                    phi4(a, xs, ts, sL, sEPS)
            pk = PK + 8*(f%2)
            packT(f, pk)
            a(f"buffer_store_dwordx4 {v(pk,4)}, v5, s[20:23], s43 offen")
            a(f"buffer_store_dwordx4 {v(pk+4,4)}, v5, s[20:23], s43 offen offset:16")
            if f<3: a(f"s_add_u32 s43, s43, 4096")
    epiKV('k')
    a("s_endpgm")
    a.label("K1_EPI_V")
    epiKV('v')
    a("s_endpgm")
    a.label("K1_EPI_Z2")
    for f in range(4):
        for q in range(4):
            xs = [ACC+4*(4*f+q)+r for r in range(4)]
            ts = [TMP+4*q+r for r in range(4)]
            gelu4(a, xs, ts, sGB, VGA)
    a(f"s_sub_u32 s43, {s(sB)}, 42")
    a(f"s_lshl_b32 s44, s43, 4")
    a(f"v_add_u32 v5, s44, {v(VC)}")
    a(f"v_mul_u32_u24 v6, 2731, v5")
    a(f"v_lshrrev_b32 v6, 16, v6")
    a(f"v_mul_u32_u24 v7, 24, v6")
    a(f"v_sub_u32 v5, v5, v7")
    a(f"v_mul_u32_u24 v7, 43, v5")
    a(f"v_lshrrev_b32 v7, 8, v7")
    a(f"v_mul_u32_u24 v8, 6, v7")
    a(f"v_sub_u32 v5, v5, v8")
    a(f"v_lshlrev_b32 v6, 6, v6")
    a(f"v_lshrrev_b32 v8, 1, {v(VG)}")
    a(f"v_add_u32 v6, v6, v8")
    a(f"s_lshl_b32 s44, {s(sRB)}, 1")
    a(f"v_add_u32 v6, s44, v6")
    a(f"v_mul_u32_u24 v6, 6, v6")
    a(f"v_add_u32 v6, v6, v5")
    a(f"v_lshlrev_b32 v6, 10, v6")
    a(f"v_and_b32 v8, 1, {v(VG)}")
    a(f"v_lshlrev_b32 v8, 9, v8")
    a(f"v_add_u32 v6, v6, v8")
    a(f"v_lshl_add_u32 v6, v7, 6, v6")
    a(f"s_mov_b32 s45, {WS_Z2F}")
    for f in range(4):
        pk = PK + 8*(f%2)
        packT(f, pk)
        a(f"buffer_store_dwordx4 {v(pk,4)}, v6, s[20:23], s45 offen offset:{f*16}")
        a(f"buffer_store_dwordx4 {v(pk+4,4)}, v6, s[20:23], s45 offen offset:{256+f*16}")
    ST0 = 64
    for q in range(4):
        for r in range(4):
            i = 4*q+r
            A = [ACC+4*(4*f+q)+r for f in range(4)]
            a(f"v_add_f32 {v(ST0+2*i)}, {v(A[0])}, {v(A[1])}")
            a(f"v_mul_f32 {v(ST0+2*i+1)}, {v(A[0])}, {v(A[0])}")
            a(f"v_add_f32 {v(ST0+2*i)}, {v(ST0+2*i)}, {v(A[2])}")
            a(f"v_fmac_f32 {v(ST0+2*i+1)}, {v(A[1])}, {v(A[1])}")
            a(f"v_add_f32 {v(ST0+2*i)}, {v(ST0+2*i)}, {v(A[3])}")
            a(f"v_fmac_f32 {v(ST0+2*i+1)}, {v(A[2])}, {v(A[2])}")
            a(f"v_fmac_f32 {v(ST0+2*i+1)}, {v(A[3])}, {v(A[3])}")
    dpp_red16(a, list(range(ST0, ST0+32)))
    a(f"s_lshl_b32 s43, s43, 14")
    a(f"s_add_u32 s43, s43, {WS_ST}")
    a(f"s_lshl_b32 s44, {s(sRB)}, 9")
    a(f"s_add_u32 s43, s43, s44")
    a(f"v_lshlrev_b32 v5, 7, {v(VG)}")
    a(f"v_cmp_eq_u32 vcc, 0, {v(VC)}")
    a("s_and_saveexec_b64 s[46:47], vcc")
    for k in range(8):
        a(f"buffer_store_dwordx4 {v(ST0+4*k,4)}, v5, s[20:23], s43 offen offset:{16*k}")
    a.label("K1_END")
    a("s_endpgm")
```

```python
from common import *

NSIDE = 48

def gen_k2(a):
    a.raw(".globl k2_kernel"); a.raw(".p2align 8"); a.raw(".type k2_kernel,@function"); a.label("k2_kernel")
    a(f"s_cmp_ge_u32 s2, {256+NSIDE}"); a("s_cbranch_scc1 K2_END")
    a(f"s_load_dwordx2 s[4:5], s[0:1], {KA_WSP}")
    a(f"s_load_dwordx2 s[6:7], s[0:1], {KA_BSP}")
    a(f"s_load_dwordx2 s[8:9], s[0:1], {KA_WO}")
    a(f"s_load_dwordx2 s[10:11], s[0:1], {KA_WS}")
    a(f"s_load_dwordx2 s[40:41], s[0:1], {KA_WOUT}")
    VLANE, VC, VG = 1,2,3
    sW = 26
    a(f"v_lshrrev_b32 v6, 6, v0")
    a(f"v_and_b32 {v(VLANE)}, 63, v0")
    a(f"v_and_b32 {v(VC)}, 15, v0")
    a(f"v_readfirstlane_b32 {s(sW)}, v6")
    a(f"v_lshrrev_b32 {v(VG)}, 4, {v(VLANE)}")
    a("s_waitcnt lgkmcnt(0)")
    srd(a, 20, 10, WS_END)
    a("s_cmp_lt_u32 s2, 32"); a("s_cbranch_scc1 K2_HEAD")
    a("s_cmp_lt_u32 s2, 44"); a("s_cbranch_scc1 K2_WOUT")
    a(f"s_cmp_lt_u32 s2, {NSIDE}"); a("s_cbranch_scc1 K2_END")
    srd(a, 12, 4, 2048*4096)
    srd(a, 16, 6, 4096)
    sTB, sFB = 24, 25
    a(f"s_sub_u32 s3, s2, {NSIDE}")
    a(f"s_and_b32 s27, s3, 7")
    a(f"s_lshl_b32 s27, s27, 2")
    a(f"s_bfe_u32 s28, s3, 0x20003")
    a(f"s_add_u32 {s(sTB)}, s27, s28")
    a(f"s_lshr_b32 {s(sFB)}, s3, 5")
    VZ0, VZ1, VWO, VR, VM = 4,5,6,7,0
    R = 8; MF = 16; T = 20
    STG = 24; DC = 144; ACC = 160
    sZ = 27; sWq = 28
    a(f"v_lshlrev_b32 {v(VZ0)}, 4, {v(VLANE)}")
    a(f"v_add_u32 {v(VZ1)}, 4096, {v(VZ0)}")
    a(f"s_lshl_b32 s32, {s(sFB)}, 6")
    a(f"s_lshl_b32 s33, {s(sW)}, 4")
    a(f"s_add_u32 s32, s32, s33")
    a(f"s_mul_i32 {s(sZ)}, s32, 6144")
    a(f"s_add_u32 {s(sZ)}, {s(sZ)}, {WS_Z2F}")
    a(f"v_lshlrev_b32 {v(VWO)}, 12, {v(VC)}")
    a(f"v_lshl_add_u32 {v(VWO)}, {v(VG)}, 4, {v(VWO)}")
    a(f"s_lshl_b32 s32, {s(sTB)}, 18")
    a(f"s_lshl_b32 s33, {s(sW)}, 10")
    a(f"s_add_u32 {s(sWq)}, s32, s33")
    for q in range(1,4):
        a(f"s_add_u32 {s(sWq+q)}, {s(sWq+q-1)}, 65536")
    def loads(u):
        b = STG + 40*(u%3)
        for q in range(4):
            a(f"buffer_load_dwordx4 {v(b+24+4*q,4)}, {v(VWO)}, s[12:15], {s(sWq+q)} offen offset:{64*u}")
        for p in range(6):
            if p<4: a(f"buffer_load_dwordx4 {v(b+4*p,4)}, {v(VZ0)}, s[20:23], {s(sZ)} offen offset:{p*1024}")
            else:   a(f"buffer_load_dwordx4 {v(b+4*p,4)}, {v(VZ1)}, s[20:23], {s(sZ)} offen offset:{(p-4)*1024}")
        a(f"s_add_u32 {s(sZ)}, {s(sZ)}, 6144")
    a(f"v_lshlrev_b32 v20, 6, {v(VLANE)}")
    a(f"s_lshl_b32 s32, {s(sW)}, 12")
    a(f"s_add_u32 s32, s32, {WS_ST}")
    SA = 144
    SL = 160
    for rnd in range(2):
        for z in range(6):
            for k in range(4):
                a(f"buffer_load_dwordx4 {v(SL+16*z+4*k,4)}, v20, s[20:23], s32 offen offset:{16*k}")
            a(f"s_add_u32 s32, s32, 16384")
        if rnd == 0:
            pass
        a("s_waitcnt vmcnt(0)")
        for z in range(6):
            for i in range(16):
                if rnd==0 and z==0: a(f"v_mov_b32 {v(SA+i)}, {v(SL+i)}")
                else: a(f"v_add_f32 {v(SA+i)}, {v(SA+i)}, {v(SL+16*z+i)}")
    for u in range(3): loads(u)
    a(f"s_mov_b32 s33, {f32bits(1.0/768)}")
    a(f"s_mov_b32 s34, {f32bits(1e-5)}")
    a(f"s_mov_b32 s35, 0xffff0000")
    for i in range(8):
        a(f"v_mul_f32 {v(SL+i)}, s33, {v(SA+2*i)}")
        a(f"v_mul_f32 {v(SL+8+i)}, s33, {v(SA+2*i+1)}")
    for i in range(8):
        a(f"v_fma_f32 {v(SL+8+i)}, -{v(SL+i)}, {v(SL+i)}, {v(SL+8+i)}")
    for i in range(8):
        a(f"v_max_f32 {v(SL+8+i)}, 0, {v(SL+8+i)}")
    for i in range(8):
        a(f"v_add_f32 {v(SL+8+i)}, s34, {v(SL+8+i)}")
    for i in range(8):
        a(f"v_rsq_f32 {v(SL+8+i)}, {v(SL+8+i)}")
    for i in range(4):
        a(f"v_cvt_pk_bf16_f32 {v(SL+16+i)}, {v(SL+2*i)}, {v(SL+2*i+1)}")
    for i in range(4):
        a(f"v_lshlrev_b32 {v(SL+24+2*i)}, 16, {v(SL+16+i)}")
        a(f"v_and_b32 {v(SL+24+2*i+1)}, s35, {v(SL+16+i)}")
    for i in range(8):
        a(f"v_sub_f32 {v(SL+24+i)}, {v(SL+i)}, {v(SL+24+i)}")
    for i in range(4):
        a(f"v_cvt_pk_bf16_f32 {v(SL+20+i)}, {v(SL+24+2*i)}, {v(SL+24+2*i+1)}")
    for i in range(4):
        a(f"v_mov_b32 {v(SL+32+i)}, 0")
    a(f"s_mul_i32 s36, {s(sW)}, 5120")
    a(f"v_lshlrev_b32 v20, 5, {v(VLANE)}")
    a(f"v_add_u32 v20, s36, v20")
    a(f"v_lshlrev_b32 v21, 4, {v(VLANE)}")
    a(f"v_add_u32 v21, s36, v21")
    a(f"ds_write_b128 v20, {v(SL+8,4)}")
    a(f"ds_write_b128 v20, {v(SL+12,4)} offset:16")
    a(f"ds_write_b128 v21, {v(SL+16,4)} offset:2048")
    a(f"ds_write_b128 v21, {v(SL+20,4)} offset:3072")
    a(f"ds_write_b128 v21, {v(SL+32,4)} offset:4096")
    a(f"v_lshlrev_b32 {v(VR)}, 5, {v(VG)}")
    a(f"v_add_u32 {v(VR)}, s36, {v(VR)}")
    a(f"v_and_b32 v20, 3, {v(VC)}")
    a(f"v_min_u32 v20, 2, v20")
    a(f"v_lshlrev_b32 v20, 10, v20")
    a(f"v_lshl_add_u32 v20, {v(VG)}, 4, v20")
    a(f"v_add_u32 {v(VM)}, s36, v20")
    a("s_waitcnt lgkmcnt(0)")
    def rread(u):
        a(f"ds_read_b128 {v(R,4)}, {v(VR)} offset:{128*u}")
        a(f"ds_read_b128 {v(R+4,4)}, {v(VR)} offset:{128*u+16}")
    def mread(u):
        a(f"ds_read_b128 {v(MF,4)}, {v(VM)} offset:{2048+64*u}")
    rread(0); mread(0)
    for u in range(16):
        nout = min(3, 16-u)
        b = STG + 40*(u%3)
        a(f"s_waitcnt vmcnt({10*(nout-1)+6}) lgkmcnt(0)")
        for q in range(4):
            for d in range(4):
                w = b+24+4*q+d
                t0, t1 = T+2*(d%2), T+2*(d%2)+1
                a(f"v_lshlrev_b32 {v(t0)}, 16, {v(w)}")
                a(f"v_and_b32 {v(t1)}, s35, {v(w)}")
                a(f"v_mul_f32 {v(t0)}, {v(t0)}, {v(R+2*d)}")
                a(f"v_mul_f32 {v(t1)}, {v(t1)}, {v(R+2*d+1)}")
                a(f"v_cvt_pk_bf16_f32 {v(w)}, {v(t0)}, {v(t1)}")
        if u+1<16: rread(u+1)
        else: a.nop(2)
        for q in range(4):
            c = "0" if u==0 else v(DC+4*q,4)
            a(f"v_mfma_f32_16x16x32_bf16 {v(DC+4*q,4)}, {v(MF,4)}, {v(b+24+4*q,4)}, {c}")
        if u+1<16: mread(u+1)
        a(f"s_waitcnt vmcnt({10*(nout-1)})")
        for p in range(6):
            for q in range(4):
                acc = ACC+4*(4*p+q)
                c = "0" if u==0 else v(acc,4)
                a(f"v_mfma_f32_16x16x32_bf16 {v(acc,4)}, {v(b+4*p,4)}, {v(b+24+4*q,4)}, {c}")
        if u+3<16: loads(u+3)
    Z1R = 24
    BS = 36
    a(f"s_lshl_b32 s32, {s(sTB)}, 6")
    a(f"s_lshl_b32 s33, {s(sW)}, 4")
    a(f"s_add_u32 s32, s32, s33")
    a(f"v_add_u32 v20, s32, {v(VC)}")
    a(f"v_lshlrev_b32 v21, 1, v20")
    a(f"buffer_load_ushort {v(BS)}, v21, s[16:19], 0 offen")
    a(f"v_mul_u32_u24 v21, 1536, v20")
    a(f"v_mul_u32_u24 v22, 48, {v(VG)}")
    a(f"v_add_u32 v21, v21, v22")
    a(f"s_mul_i32 s34, {s(sFB)}, 192")
    a(f"s_add_u32 s34, s34, {WS_Z1}")
    for m in range(3):
        a(f"buffer_load_dwordx4 {v(Z1R+4*m,4)}, v21, s[20:23], s34 offen offset:{16*m}")
    a("s_barrier")
    a(f"v_lshlrev_b32 v22, 3, {v(VLANE)}")
    for q in range(4):
        lab = a.newlabel("K2_SK")
        a(f"s_cmp_eq_u32 {s(sW)}, {q}")
        a(f"s_cbranch_scc1 {lab}")
        a(f"s_cmp_gt_u32 {s(sW)}, {q}")
        a(f"s_cselect_b32 s36, 1, 0")
        a(f"s_sub_u32 s36, {s(sW)}, s36")
        a(f"s_add_u32 s36, s36, {3*q}")
        a(f"s_mul_i32 s37, s36, 6144")
        a(f"v_add_u32 v23, s37, {v(VZ0)}")
        for p in range(6):
            a(f"ds_write_b128 v23, {v(ACC+4*(4*p+q),4)} offset:{p*1024}")
        a(f"s_lshl_b32 s37, s36, 9")
        a(f"v_add_u32 v23, s37, v22")
        a(f"ds_write_b64 v23, {v(DC+4*q,2)} offset:{73728-65536+65536 if False else 0}") if False else None
        a(f"v_add_u32 v23, 73728, v23")
        a(f"ds_write_b64 v23, {v(DC+4*q,2)}")
        a.label(lab)
    FIN = 40
    for q in range(4):
        lab = a.newlabel("K2_MV")
        a(f"s_cmp_lg_u32 {s(sW)}, {q}")
        a(f"s_cbranch_scc1 {lab}")
        for p in range(6):
            for r in range(4):
                a(f"v_mov_b32 {v(FIN+4*p+r)}, {v(ACC+4*(4*p+q)+r)}")
        a(f"v_mov_b32 {v(FIN+24)}, {v(DC+4*q)}")
        a(f"v_mov_b32 {v(FIN+25)}, {v(DC+4*q+1)}")
        a.label(lab)
    a("s_waitcnt lgkmcnt(0)")
    a("s_barrier")
    a(f"s_mul_i32 s37, {s(sW)}, {3*6144}")
    a(f"v_add_u32 v23, s37, {v(VZ0)}")
    a(f"s_mul_i32 s37, {s(sW)}, {3*512}")
    a(f"s_add_u32 s37, s37, 73728")
    a(f"v_add_u32 v22, s37, v22")
    RD = 72
    for src in range(3):
        for p in range(6):
            a(f"ds_read_b128 {v(RD+28*src+4*p,4)}, v23 offset:{src*6144+p*1024}")
        a(f"ds_read_b64 {v(RD+28*src+24,2)}, v22 offset:{src*512}")
    a("s_waitcnt lgkmcnt(0)")
    for src in range(3):
        for i in range(26):
            a(f"v_add_f32 {v(FIN+i)}, {v(FIN+i)}, {v(RD+28*src+i)}")
    a("s_waitcnt vmcnt(0)")
    a(f"v_lshlrev_b32 {v(BS)}, 16, {v(BS)}")
    a(f"v_add_f32 {v(FIN+24)}, {v(FIN+24)}, {v(FIN+25)}")
    a(f"v_sub_f32 {v(BS)}, {v(BS)}, {v(FIN+24)}")
    a(f"s_lshl_b32 s32, {s(sTB)}, 2")
    a(f"s_add_u32 s32, s32, {s(sW)}")
    a(f"s_mul_i32 s32, s32, {44*1024}")
    a(f"s_add_u32 s32, s32, {WS_ACT}")
    a(f"s_mul_i32 s33, {s(sFB)}, 12")
    a(f"s_add_u32 s33, s33, 80")
    a(f"v_mul_u32_u24 v20, 3, {v(VG)}")
    a(f"v_add_u32 v20, s33, v20")
    for m in range(3):
        a(f"v_add_u32 v21, {m}, v20")
        a(f"v_lshlrev_b32 v21, 8, v21")
        a(f"v_lshl_add_u32 v21, {v(VC)}, 4, v21")
        for hh in range(2):
            p = 2*m+hh
            zr = Z1R+4*m+2*hh
            a(f"v_lshlrev_b32 v68, 16, {v(zr)}")
            a(f"v_and_b32 v69, s35, {v(zr)}")
            a(f"v_lshlrev_b32 v70, 16, {v(zr+1)}")
            a(f"v_and_b32 v71, s35, {v(zr+1)}")
            for r in range(4):
                a(f"v_add_f32 {v(FIN+4*p+r)}, {v(FIN+4*p+r)}, {v(BS)}")
            for r in range(4):
                a(f"v_mul_f32 {v(FIN+4*p+r)}, {v(FIN+4*p+r)}, v{68+r}")
            a(f"v_cvt_pk_bf16_f32 {v(RD+4*m+2*hh)}, {v(FIN+4*p)}, {v(FIN+4*p+1)}")
            a(f"v_cvt_pk_bf16_f32 {v(RD+4*m+2*hh+1)}, {v(FIN+4*p+2)}, {v(FIN+4*p+3)}")
        a(f"buffer_store_dwordx4 {v(RD+4*m,4)}, v21, s[20:23], s32 offen")
    a("s_endpgm")

    a.label("K2_WOUT")
    srd(a, 12, 40, 768*1280)
    a(f"s_sub_u32 s3, s2, 32")
    a(f"s_lshl_b32 s3, s3, 3")
    a(f"s_mov_b32 s30, 0x05040100")
    a(f"s_mov_b32 s31, 0x07060302")
    a(f"s_mov_b32 s32, {WS_WCT}")
    for it in range(5):
        a(f"v_add_u32 v4, {256*it}, v0")
        a(f"v_mul_u32_u24 v5, 6554, v4")
        a(f"v_lshrrev_b32 v5, 20, v5")
        a(f"v_mul_u32_u24 v6, 160, v5")
        a(f"v_sub_u32 v6, v4, v6")
        a(f"v_add_u32 v5, s3, v5")
        a(f"v_mul_u32_u24 v7, {8*1280}, v5")
        a(f"v_lshl_add_u32 v7, v6, 3, v7")
        for j in range(8):
            off = j*1280
            if off < 4096: a(f"buffer_load_dwordx2 {v(16+2*j,2)}, v7, s[12:15], 0 offen offset:{off}")
            else:
                a(f"s_movk_i32 s33, {off}")
                a(f"buffer_load_dwordx2 {v(16+2*j,2)}, v7, s[12:15], s33 offen")
        a(f"v_mul_u32_u24 v8, 3277, v6")
        a(f"v_lshrrev_b32 v8, 16, v8")
        a(f"v_mul_u32_u24 v9, 20, v8")
        a(f"v_sub_u32 v9, v6, v9")
        a(f"v_mul_u32_u24 v10, 52, v9")
        a(f"v_lshrrev_b32 v10, 8, v10")
        a(f"v_mul_u32_u24 v11, 5, v10")
        a(f"v_sub_u32 v11, v9, v11")
        a(f"v_add_u32 v5, 80, v5")
        a(f"v_lshrrev_b32 v12, 2, v5")
        a(f"v_and_b32 v13, 3, v5")
        a(f"v_mul_u32_u24 v8, 44, v8")
        a(f"v_add_u32 v8, v8, v12")
        a(f"v_mul_u32_u24 v8, 5, v8")
        a(f"v_add_u32 v8, v8, v11")
        a(f"v_lshlrev_b32 v8, 10, v8")
        a(f"v_lshl_add_u32 v8, v13, 8, v8")
        a(f"v_lshl_add_u32 v8, v10, 6, v8")
        a("s_waitcnt vmcnt(0)")
        for f in range(4):
            sel = 30 if (f&1)==0 else 31
            for d in range(4):
                a(f"v_perm_b32 {v(32+4*f+d)}, {v(16+2*(2*d+1)+(f>>1))}, {v(16+2*(2*d)+(f>>1))}, {s(sel)}")
        for f in range(4):
            a(f"buffer_store_dwordx4 {v(32+4*f,4)}, v8, s[20:23], s32 offen offset:{16*f}")
        a("s_waitcnt vmcnt(0)")
    a("s_endpgm")

    a.label("K2_HEAD")
    srd(a, 12, 8, 640*1280)
    sH = 24
    a(f"s_mov_b32 {s(sH)}, s2")
    a(f"v_lshlrev_b32 v4, 12, {v(VC)}")
    a(f"v_lshl_add_u32 v4, {v(VG)}, 4, v4")
    a(f"s_mul_i32 s27, {s(sH)}, {20*4096}")
    a(f"s_lshl_b32 s28, {s(sW)}, 10")
    a(f"s_add_u32 s27, s27, s28")
    a(f"s_add_u32 s27, s27, {WS_PKT}")
    a(f"s_add_u32 s28, s27, 65536")
    a(f"s_add_u32 s29, s27, {WS_VT-WS_PKT}")
    a(f"s_add_u32 s30, s29, 65536")
    ON = 8; HA = 12
    LB = 40
    for i in range(4): a(f"v_mov_b32 {v(ON+i)}, 0x3f803f80")
    for half in range(2):
        for uu in range(8):
            u = 8*half+uu
            for k in range(4):
                a(f"buffer_load_dwordx4 {v(LB+16*uu+4*k,4)}, v4, s[20:23], {s(27+k)} offen offset:{64*u}")
        for uu in range(8):
            u = 8*half+uu
            a(f"s_waitcnt vmcnt({4*(7-uu)})")
            b = LB+16*uu
            pairs = [(b, b+8),(b, b+12),(b+4, b+8),(b+4, b+12),(b, ON),(b+4, ON)]
            for ti,(A,B) in enumerate(pairs):
                c = "0" if u==0 else v(HA+4*ti,4)
                a(f"v_mfma_f32_16x16x32_bf16 {v(HA+4*ti,4)}, {v(A,4)}, {v(B,4)}, {c}")
    WOV = 40
    a(f"s_lshr_b32 s31, {s(sW)}, 1")
    a(f"s_mul_i32 s31, s31, 320")
    a(f"v_add_u32 v5, s31, {v(VLANE)}")
    a(f"v_lshlrev_b32 v6, 1, v5")
    a(f"s_mul_i32 s32, {s(sH)}, {20*1280}")
    a.nop(8)
    a(f"s_mul_i32 s33, {s(sW)}, 6144")
    a(f"v_lshlrev_b32 v7, 4, {v(VLANE)}")
    a(f"v_add_u32 v7, s33, v7")
    for ti in range(6):
        a(f"ds_write_b128 v7, {v(HA+4*ti,4)} offset:{ti*1024}")
    for e in range(20):
        for i in range(5):
            a(f"buffer_load_ushort {v(WOV+5*e+i)}, v6, s[12:15], s32 offen offset:{128*i}")
        a(f"s_add_u32 s32, s32, 1280")
    a("s_waitcnt lgkmcnt(0)")
    a("s_barrier")
    KVB = 24576
    for rnd in range(2):
        a(f"v_add_u32 v8, {256*rnd}, v0")
        a(f"v_mul_u32_u24 v9, 3277, v8")
        a(f"v_lshrrev_b32 v9, 16, v9")
        a(f"v_mul_u32_u24 v10, 20, v9")
        a(f"v_sub_u32 v10, v8, v10")
        a(f"v_lshrrev_b32 v11, 4, v9")
        a(f"v_lshlrev_b32 v11, 11, v11")
        a(f"v_lshrrev_b32 v12, 4, v10")
        a(f"v_lshl_add_u32 v11, v12, 10, v11")
        a(f"v_bfe_u32 v12, v9, 2, 2")
        a(f"v_lshl_add_u32 v11, v12, 8, v11")
        a(f"v_and_b32 v12, 15, v10")
        a(f"v_lshl_add_u32 v11, v12, 4, v11")
        a(f"v_and_b32 v12, 3, v9")
        a(f"v_lshl_add_u32 v11, v12, 2, v11")
        for w in range(4):
            a(f"ds_read_b32 v{16+w}, v11 offset:{w*6144}")
        a(f"v_cmp_lt_u32 vcc, 9, v9")
        a(f"v_mul_u32_u24 v13, 24, v10")
        a(f"v_add_u32 v13, v13, v9")
        a(f"v_add_u32 v14, 2, v13")
        a(f"v_cndmask_b32 v13, v13, v14, vcc")
        a(f"v_lshlrev_b32 v13, 2, v13")
        a("s_waitcnt lgkmcnt(0)")
        a("v_add_f32 v16, v16, v17"); a("v_add_f32 v18, v18, v19"); a("v_add_f32 v16, v16, v18")
        a(f"v_cmp_gt_u32 vcc, 400, v8")
        a("s_and_saveexec_b64 s[34:35], vcc")
        a(f"ds_write_b32 v13, v16 offset:{KVB}")
        a("s_mov_b64 exec, s[34:35]")
    a(f"v_and_b32 v9, 31, v0")
    a(f"v_lshrrev_b32 v11, 4, v9")
    a(f"v_lshlrev_b32 v11, 10, v11")
    a(f"v_bfe_u32 v12, v9, 2, 2")
    a(f"v_lshl_add_u32 v11, v12, 8, v11")
    a(f"v_and_b32 v12, 3, v9")
    a(f"v_lshl_add_u32 v11, v12, 2, v11")
    for w in range(4):
        a(f"ds_read_b32 v{16+w}, v11 offset:{4096+w*6144}")
    a(f"v_lshlrev_b32 v13, 2, v9")
    a("s_waitcnt lgkmcnt(0)")
    a("v_add_f32 v16, v16, v17"); a("v_add_f32 v18, v18, v19"); a("v_add_f32 v16, v16, v18")
    a(f"v_cmp_gt_u32 vcc, 20, v0")
    a("s_and_saveexec_b64 s[34:35], vcc")
    a(f"ds_write_b32 v13, v16 offset:{KVB+2048}")
    a("s_mov_b64 exec, s[34:35]")
    a("s_waitcnt lgkmcnt(0)")
    a("s_barrier")
    MA = 140; KVR = 192
    a(f"s_and_b32 s33, {s(sW)}, 1")
    a(f"s_mul_i32 s34, s33, 48")
    a(f"s_add_u32 s34, s34, {KVB}")
    a(f"v_mov_b32 v7, s34")
    a("s_waitcnt vmcnt(0)")
    for e in range(20):
        for k in range(3):
            a(f"ds_read_b128 {v(KVR+4*k,4)}, v7 offset:{e*96+16*k}")
        for i in range(5):
            a(f"v_lshlrev_b32 {v(WOV+5*e+i)}, 16, {v(WOV+5*e+i)}")
        a("s_waitcnt lgkmcnt(0)")
        for i in range(5):
            for dd in range(10):
                if e==0: a(f"v_mul_f32 {v(MA+10*i+dd)}, {v(WOV+5*e+i)}, {v(KVR+dd)}")
                else: a(f"v_fmac_f32 {v(MA+10*i+dd)}, {v(WOV+5*e+i)}, {v(KVR+dd)}")
    a(f"s_mul_i32 s35, {s(sH)}, 20")
    a(f"s_mul_i32 s36, s33, 10")
    a(f"s_add_u32 s35, s35, s36")
    for m in range(5):
        a(f"s_add_u32 s36, s35, {2*m}")
        a(f"s_lshr_b32 s37, s36, 5")
        a(f"s_mul_i32 s37, s37, 5120")
        a(f"s_bfe_u32 s38, s36, 0x20003")
        a(f"s_lshl_b32 s38, s38, 8")
        a(f"s_add_u32 s37, s37, s38")
        a(f"s_and_b32 s38, s36, 7")
        a(f"s_lshl_b32 s38, s38, 1")
        a(f"s_add_u32 s37, s37, s38")
        a(f"s_add_u32 {s(42+m)}, s37, {WS_WCT}")
    for i in range(5):
        a(f"v_add_u32 v8, {64*i}, v5")
        a(f"v_mul_u32_u24 v9, 820, v8")
        a(f"v_lshrrev_b32 v9, 16, v9")
        a(f"v_mul_u32_u24 v10, 80, v9")
        a(f"v_sub_u32 v10, v8, v10")
        a(f"v_mul_u32_u24 v11, 3277, v10")
        a(f"v_lshrrev_b32 v11, 16, v11")
        a(f"v_mul_u32_u24 v12, 20, v11")
        a(f"v_sub_u32 v12, v10, v12")
        a(f"v_lshrrev_b32 v13, 2, v12")
        a(f"v_and_b32 v12, 3, v12")
        a(f"v_mul_u32_u24 v9, 220, v9")
        a(f"v_add_u32 v9, v9, v13")
        a(f"v_lshlrev_b32 v9, 10, v9")
        a(f"v_lshl_add_u32 v9, v11, 6, v9")
        a(f"v_lshl_add_u32 v9, v12, 4, v9")
        for m in range(5):
            a(f"v_cvt_pk_bf16_f32 v{14+m}, {v(MA+10*i+2*m)}, {v(MA+10*i+2*m+1)}")
            a(f"buffer_store_dword v{14+m}, v9, s[20:23], {s(42+m)} offen")
    ZR = 192
    a(f"v_mov_b32 v7, {KVB+2048}")
    for k in range(5):
        a(f"ds_read_b128 {v(ZR+4*k,4)}, v7 offset:{16*k}")
    a(f"s_mul_i32 s35, {s(sH)}, 20")
    for m in range(5):
        a(f"s_add_u32 s36, s35, {4*m}")
        a(f"s_lshr_b32 s37, s36, 3")
        a(f"s_lshl_b32 s37, s37, 8")
        a(f"s_bfe_u32 s38, s36, 0x10002")
        a(f"s_lshl_b32 s38, s38, 3")
        a(f"s_add_u32 s37, s37, s38")
        a(f"s_add_u32 {s(42+m)}, s37, {WS_ACT}")
    a(f"s_mul_i32 s36, {s(sH)}, 40")
    a(f"v_mul_u32_u24 v8, 1280, v0")
    PQ = 40
    for i in range(8):
        for m in range(5):
            a(f"buffer_load_dwordx2 {v(PQ+10*i+2*m,2)}, v8, s[20:23], s36 offen offset:{8*m}")
        a(f"s_add_u32 s36, s36, {256*1280}")
    a(f"v_lshrrev_b32 v9, 4, v0")
    a(f"v_mul_u32_u24 v9, 45056, v9")
    a(f"v_lshl_add_u32 v9, {v(VC)}, 4, v9")
    a(f"s_mov_b32 s35, 0xffff0000")
    a(f"s_mov_b32 s39, {f32bits(1e-6)}")
    a("s_waitcnt lgkmcnt(0)")
    U = 140
    for i in range(8):
        a(f"s_waitcnt vmcnt({5*(7-i)})") if i>0 or True else None
        for m in range(10):
            a(f"v_lshlrev_b32 {v(U+2*m)}, 16, {v(PQ+10*i+m)}")
            a(f"v_and_b32 {v(U+2*m+1)}, s35, {v(PQ+10*i+m)}")
        a(f"v_mul_f32 v10, {v(U)}, {v(ZR)}")
        a(f"v_mul_f32 v11, {v(U+1)}, {v(ZR+1)}")
        for d in range(2,20):
            a(f"v_fmac_f32 v{10+d%2}, {v(U+d)}, {v(ZR+d)}")
        a("v_add_f32 v10, v10, v11")
        a("v_add_f32 v10, s39, v10")
        a("v_rcp_f32 v10, v10")
        a.nop(1)
        for d in range(20):
            a(f"v_mul_f32 {v(U+d)}, {v(U+d)}, v10")
        for m in range(10):
            a(f"v_cvt_pk_bf16_f32 {v(PQ+10*i+m)}, {v(U+2*m)}, {v(U+2*m+1)}")
        for m in range(5):
            a(f"buffer_store_dwordx2 {v(PQ+10*i+2*m,2)}, v9, s[20:23], {s(42+m)} offen")
        a(f"v_add_u32 v9, {16*45056}, v9")
    a.label("K2_END")
    a("s_endpgm")
```

```python
from common import *

def gen_k3(a):
    a.raw(".globl k3_kernel"); a.raw(".p2align 8"); a.raw(".type k3_kernel,@function"); a.label("k3_kernel")
    a("s_cmp_ge_u32 s2, 256"); a("s_cbranch_scc1 K3_END")
    a(f"s_load_dwordx2 s[4:5], s[0:1], {KA_X}")
    a(f"s_load_dwordx2 s[6:7], s[0:1], {KA_OUT}")
    a(f"s_load_dwordx2 s[10:11], s[0:1], {KA_WS}")
    VLANE, VC, VG, VO0, VO1 = 1,2,3,4,5
    sSB, sNB, sW = 24,25,26
    sA = 27; sBq = 28
    NST = 4
    XR = 8
    STG = 20
    ACC = STG + NST*36
    a(f"s_and_b32 s27, s2, 7")
    a(f"s_lshl_b32 s27, s27, 2")
    a(f"s_bfe_u32 s28, s2, 0x20003")
    a(f"s_add_u32 {s(sSB)}, s27, s28")
    a(f"s_lshr_b32 {s(sNB)}, s2, 5")
    a(f"v_lshrrev_b32 v6, 6, v0")
    a(f"v_and_b32 {v(VLANE)}, 63, v0")
    a(f"v_and_b32 {v(VC)}, 15, v0")
    a(f"v_readfirstlane_b32 {s(sW)}, v6")
    a(f"v_lshrrev_b32 {v(VG)}, 4, {v(VLANE)}")
    a(f"v_lshlrev_b32 {v(VO0)}, 4, {v(VLANE)}")
    a(f"v_add_u32 {v(VO1)}, 4096, {v(VO0)}")
    a(f"s_mul_i32 s32, {s(sNB)}, 44")
    a(f"s_mul_i32 s33, {s(sW)}, 11")
    a(f"s_add_u32 s32, s32, s33")
    a(f"s_mul_i32 {s(sA)}, s32, 5120")
    a(f"s_add_u32 {s(sA)}, {s(sA)}, {WS_WCT}")
    a(f"s_mul_i32 s32, {s(sSB)}, 176")
    a(f"s_add_u32 s32, s32, s33")
    a(f"s_lshl_b32 s32, s32, 10")
    a(f"s_add_u32 {s(sBq)}, s32, {WS_ACT}")
    for q in range(1,4):
        a(f"s_add_u32 {s(sBq+q)}, {s(sBq+q-1)}, {44*1024}")
    a("s_waitcnt lgkmcnt(0)")
    srd(a, 12, 4, 2048*1280)
    srd(a, 16, 6, 2048*1280)
    srd(a, 20, 10, WS_END)
    def loads(u):
        b = STG + 36*(u%NST)
        for p in range(5):
            if p<4: a(f"buffer_load_dwordx4 {v(b+4*p,4)}, {v(VO0)}, s[20:23], {s(sA)} offen offset:{p*1024}")
            else:   a(f"buffer_load_dwordx4 {v(b+4*p,4)}, {v(VO1)}, s[20:23], {s(sA)} offen")
        for q in range(4):
            a(f"buffer_load_dwordx4 {v(b+20+4*q,4)}, {v(VO0)}, s[20:23], {s(sBq+q)} offen")
        a(f"s_add_u32 {s(sA)}, {s(sA)}, 5120")
        for q in range(4):
            a(f"s_add_u32 {s(sBq+q)}, {s(sBq+q)}, 1024")
    for u in range(NST): loads(u)
    a(f"s_lshl_b32 s32, {s(sSB)}, 6")
    a(f"s_lshl_b32 s33, {s(sW)}, 4")
    a(f"s_add_u32 s32, s32, s33")
    a(f"v_add_u32 v6, s32, {v(VC)}")
    a(f"v_mul_u32_u24 v6, 1280, v6")
    a(f"v_mul_u32_u24 v7, 40, {v(VG)}")
    a(f"v_add_u32 v6, v6, v7")
    a(f"s_mul_i32 s34, {s(sNB)}, 160")
    for u in range(11):
        nout = min(NST, 11-u)
        a(f"s_waitcnt vmcnt({9*(nout-1)})")
        b = STG + 36*(u%NST)
        for p in range(5):
            for q in range(4):
                acc = ACC + 4*(4*p+q)
                c = "0" if u==0 else v(acc,4)
                a(f"v_mfma_f32_16x16x32_bf16 {v(acc,4)}, {v(b+4*p,4)}, {v(b+20+4*q,4)}, {c}")
        if u+NST < 11: loads(u+NST)
    for p in range(5):
        a(f"buffer_load_dwordx2 {v(XR+2*p,2)}, v6, s[12:15], s34 offen offset:{8*p}")
    a.nop(8)
    a(f"s_mul_i32 s35, {s(sW)}, 5120")
    a(f"v_add_u32 v7, s35, {v(VO0)}")
    for q in range(4):
        lab = a.newlabel("K3_SK")
        a(f"s_cmp_eq_u32 {s(sW)}, {q}")
        a(f"s_cbranch_scc1 {lab}")
        for p in range(5):
            a(f"ds_write_b128 v7, {v(ACC+4*(4*p+q),4)} offset:{p*1024}")
        a.label(lab)
        a(f"v_add_u32 v7, 20480, v7")
    FIN = 20
    for q in range(4):
        lab = a.newlabel("K3_MV")
        a(f"s_cmp_lg_u32 {s(sW)}, {q}")
        a(f"s_cbranch_scc1 {lab}")
        for p in range(5):
            for r in range(4):
                a(f"v_mov_b32 {v(FIN+4*p+r)}, {v(ACC+4*(4*p+q)+r)}")
        a.label(lab)
    a("s_waitcnt lgkmcnt(0)")
    a("s_barrier")
    a(f"s_mul_i32 s35, {s(sW)}, 20480")
    a(f"v_add_u32 v7, s35, {v(VO0)}")
    RD = 40
    for src in range(4):
        lab = a.newlabel("K3_RD")
        a(f"s_cmp_eq_u32 {s(sW)}, {src}")
        a(f"s_cbranch_scc1 {lab}")
        for p in range(5):
            a(f"ds_read_b128 {v(RD+4*p,4)}, v7 offset:{src*5120+p*1024}")
        a("s_waitcnt lgkmcnt(0)")
        for i in range(20):
            a(f"v_add_f32 {v(FIN+i)}, {v(FIN+i)}, {v(RD+i)}")
        a.label(lab)
    a("s_waitcnt vmcnt(0)")
    a(f"s_mov_b32 s36, 0xffff0000")
    for p in range(5):
        a(f"v_lshlrev_b32 v60, 16, {v(XR+2*p)}")
        a(f"v_and_b32 v61, s36, {v(XR+2*p)}")
        a(f"v_lshlrev_b32 v62, 16, {v(XR+2*p+1)}")
        a(f"v_and_b32 v63, s36, {v(XR+2*p+1)}")
        for r in range(4):
            a(f"v_add_f32 {v(FIN+4*p+r)}, {v(FIN+4*p+r)}, v{60+r}")
        a(f"v_cvt_pk_bf16_f32 {v(64+2*p)}, {v(FIN+4*p)}, {v(FIN+4*p+1)}")
        a(f"v_cvt_pk_bf16_f32 {v(64+2*p+1)}, {v(FIN+4*p+2)}, {v(FIN+4*p+3)}")
        a(f"buffer_store_dwordx2 {v(64+2*p,2)}, v6, s[16:19], s34 offen offset:{8*p}")
    a.label("K3_END")
    a("s_endpgm")
    return ACC+80
```

```python
import sys
from common import *
from k1 import gen_k1
from k2 import gen_k2, NSIDE
from k3 import gen_k3
hdr = open('parallel_sum__linear_attn_block__mixer_gmlp__prompt.s.ref').read().split('\n')
head = [l for l in hdr if l.startswith(';') and '@launch' not in l]
out = "\n".join(head) + "\n"
out += "; @launch kernel=k1_kernel grid=(256,1,1) block=(512,1,1) lds=81920\n"
out += f"; @launch kernel=k2_kernel grid=({256+NSIDE},1,1) block=(256,1,1) lds=79872\n"
out += "; @launch kernel=k3_kernel grid=(256,1,1) block=(256,1,1) lds=81920\n"
out += '.amdgcn_target "amdgcn-amd-amdhsa--gfx950"\n.text\n'
a = Asm(); gen_k1(a); out += a.text() + kernel_desc("k1_kernel", 256)
a2 = Asm(); a2.lab = 1000; gen_k2(a2); out += a2.text() + kernel_desc("k2_kernel", 256)
a3 = Asm(); a3.lab = 2000; gen_k3(a3); out += a3.text() + kernel_desc("k3_kernel", 256)
dst = sys.argv[1] if len(sys.argv)>1 else 'parallel_sum__linear_attn_block__mixer_gmlp__prompt.s'
open(dst,'w').write(out)
print("wrote", dst, len(out))
```

```python
class Asm:
    def __init__(self):
        self.lines = []
        self.lab = 0
    def __call__(self, s):
        self.lines.append("    " + s)
    def raw(self, s):
        self.lines.append(s)
    def label(self, name):
        self.lines.append(name + ":")
    def newlabel(self, pfx="L"):
        self.lab += 1
        return f"{pfx}_{self.lab}"
    def nop(self, n):
        while n > 0:
            k = min(n, 16)
            self(f"s_nop {k-1}")
            n -= k
    def text(self):
        return "\n".join(self.lines) + "\n"

def v(i, n=1):
    return f"v{i}" if n == 1 else f"v[{i}:{i+n-1}]"
def s(i, n=1):
    return f"s{i}" if n == 1 else f"s[{i}:{i+n-1}]"

WS_PQ  = 0x0
WS_KVP = 0x280000
WS_Z1  = 0x780000
WS_Z2F = 0xA80000
WS_ST  = 0xD80000
WS_ACT = 0xDC0000
WS_WCT = 0x1340000
WS_END = 0x14F8000

KA_X, KA_WQKV, KA_WO, KA_BX, KA_WIN, KA_WSP, KA_BSP, KA_WOUT, KA_OUT, KA_DBG, KA_WS = [8*i for i in range(11)]

def srd(a, sd, sptr, nbytes):
    a(f"s_mov_b32 {s(sd)}, {s(sptr)}")
    a(f"s_and_b32 {s(sd+1)}, {s(sptr+1)}, 0xffff")
    a(f"s_mov_b32 {s(sd+2)}, {nbytes}")
    a(f"s_mov_b32 {s(sd+3)}, 0x00020000")

def kernel_desc(name, vgpr, sgpr=102, accum=None):
    if accum is None:
        accum = (vgpr + 3)//4*4
    return f""".section .rodata,"a"
.p2align 6
.amdhsa_kernel {name}
  .amdhsa_next_free_vgpr {vgpr}
  .amdhsa_next_free_sgpr {sgpr}
  .amdhsa_accum_offset {accum}
  .amdhsa_group_segment_fixed_size 0
  .amdhsa_kernarg_size 88
  .amdhsa_user_sgpr_count 2
  .amdhsa_user_sgpr_kernarg_segment_ptr 1
  .amdhsa_system_sgpr_workgroup_id_x 1
.end_amdhsa_kernel
.text
"""
import struct
def f32bits(x):
    return "0x%08x" % struct.unpack("<I", struct.pack("<f", x))[0]

STAMPS = False
def stamp(a, i):
    if STAMPS:
        a(f"s_memtime s[{60+2*i}:{61+2*i}]")
def stamp_rt(a, i):
    if STAMPS:
        a(f"s_memrealtime s[{60+2*i}:{61+2*i}]")
def stamp_flush(a, n, wg, swave, wave):
    if not STAMPS: return
    lab = a.newlabel("STF")
    a(f"s_cmp_lg_u32 s2, {wg}"); a(f"s_cbranch_scc1 {lab}")
    a(f"s_cmp_lg_u32 s{swave}, {wave}"); a(f"s_cbranch_scc1 {lab}")
    a(f"s_load_dwordx2 s[92:93], s[0:1], {KA_DBG}")
    a("s_waitcnt lgkmcnt(0)")
    srd(a, 96, 92, 256)
    a("s_mov_b64 exec, 1")
    for i in range(n):
        a(f"v_mov_b32 v0, s{60+2*i}")
        a(f"v_mov_b32 v1, {4*i}")
        a(f"buffer_store_dword v0, v1, s[96:99], 0 offen")
    a("s_waitcnt vmcnt(0)")
    a.label(lab)

TRACE_BASE = 0x2000000
def trace_begin(a):
    if STAMPS:
        a("s_memrealtime s[88:89]")
def trace_end(a, kidx, swave, tag=0):
    if not STAMPS: return
    a("s_waitcnt vmcnt(0) lgkmcnt(0)")
    a("s_memrealtime s[90:91]")
    a("s_mov_b64 exec, 1")
    a("s_mov_b32 s96, s10"); a("s_and_b32 s97, s11, 0xffff"); a("s_mov_b32 s98, 0x8000000"); a("s_mov_b32 s99, 0x00020000")
    a(f"s_lshl_b32 s92, s2, 4")
    a(f"s_add_u32 s92, s92, s{swave}")
    a(f"s_lshl_b32 s92, s92, 4")
    a(f"s_add_u32 s92, s92, {TRACE_BASE + kidx*0x100000}")
    a("s_getreg_b32 s93, hwreg(HW_REG_XCC_ID)")
    a("s_getreg_b32 s94, hwreg(HW_REG_HW_ID)")
    a("s_waitcnt lgkmcnt(0)")
    a("v_mov_b32 v0, s88"); a("v_mov_b32 v1, s90"); a("v_mov_b32 v2, s93"); a("v_mov_b32 v3, s94")
    a("v_mov_b32 v4, s92")
    a("buffer_store_dwordx4 v[0:3], v4, s[96:99], 0 offen")
    a("s_waitcnt vmcnt(0)")

class VM:
    def __init__(self): self.ops=[]
    def issue(self, tag): self.ops.append(tag)
    def need(self, tag):
        last = max(i for i,t in enumerate(self.ops) if t==tag)
        return min(63, len(self.ops)-1-last)
```

```python
from common import *
import os
ABL = os.environ.get('ABL','').split(',')

LOG2E = 1.4426950408889634
GA = -2.0*0.7978845608028654*LOG2E
GB = GA*0.044715

def gelu4(a, xs, ts, sB, vA):
    for x,t in zip(xs,ts): a(f"v_mul_f32 {v(t)}, {v(x)}, {v(x)}")
    for x,t in zip(xs,ts): a(f"v_fma_f32 {v(t)}, {v(t)}, {s(sB)}, {v(vA)}")
    for x,t in zip(xs,ts): a(f"v_mul_f32 {v(t)}, {v(t)}, {v(x)}")
    for x,t in zip(xs,ts): a(f"v_exp_f32 {v(t)}, {v(t)}")
    for x,t in zip(xs,ts): a(f"v_add_f32 {v(t)}, 1.0, {v(t)}")
    for x,t in zip(xs,ts): a(f"v_rcp_f32 {v(t)}, {v(t)}")
    for x,t in zip(xs,ts): a(f"v_mul_f32 {v(x)}, {v(x)}, {v(t)}")

def phi4(a, xs, ts, sL, sEps):
    for x,t in zip(xs,ts): a(f"v_mul_f32 {v(t)}, {s(sL)}, {v(x)}")
    for x,t in zip(xs,ts): a(f"v_min_f32 {v(t)}, 0, {v(t)}")
    for x,t in zip(xs,ts): a(f"v_exp_f32 {v(t)}, {v(t)}")
    for x,t in zip(xs,ts): a(f"v_max_f32 {v(x)}, 0, {v(x)}")
    for x,t in zip(xs,ts): a(f"v_add_f32 {v(x)}, {s(sEps)}, {v(x)}")
    for x,t in zip(xs,ts): a(f"v_add_f32 {v(x)}, {v(x)}, {v(t)}")

def dpp_red16(a, regs):
    for rot in (8,4,2,1):
        for r in regs:
            a(f"v_add_f32_dpp {v(r)}, {v(r)}, {v(r)} row_ror:{rot} row_mask:0xf bank_mask:0xf")
        if len(regs) < 3:
            a.nop(2)

TQ, TK, TV, TZ1, TZ2 = 0,1,2,3,4
JOBS = [
 [(TK,0),(TK,1),(TV,0),(TV,1)], [(TK,2),(TK,3),(TV,2),(TV,3)], [(TK,4),(TK,5),(TV,4),(TV,5)],
 [(TK,6),(TK,7),(TV,6),(TV,7)], [(TK,8),(TK,9),(TV,8),(TV,9)], [(TK,10),(TQ,8),(TV,10),(TQ,9)],
 [(TQ,0),(TQ,1),(TQ,2),(TQ,3)],
 [(TQ,4),(TQ,5),(TQ,6),(TQ,7)],
 [(TZ1,0),(TZ1,1),(TZ1,2),(TZ1,3)], [(TZ1,4),(TZ1,5),(TZ1,6),(TZ1,7)], [(TZ1,8),(TZ1,9),(TZ1,10),(TZ1,11)],
 [(TZ2,0),(TZ2,1),(TZ2,2),(TZ2,3)], [(TZ2,4),(TZ2,5),(TZ2,6),(TZ2,7)], [(TZ2,8),(TZ2,9),(TZ2,10),(TZ2,11)],
]
STAGE = 49152
LDS_ST = 3*STAGE
LDS_CS = LDS_ST + 1024
LDS_ZS = LDS_CS + 1024
K1_LDS = LDS_ZS + 1024
KVPITCH = 144
NWG1 = 256

def gen_k1(a):
    a.raw(".globl k1_kernel"); a.raw(".p2align 8"); a.raw(".type k1_kernel,@function"); a.label("k1_kernel")
    a(f"s_cmp_ge_u32 s2, 256"); a("s_cbranch_scc1 K1_END")
    a(f"s_cmp_ge_u32 s2, 224"); a("s_cbranch_scc1 K1_PF")
    stamp(a,0); stamp_rt(a,1); trace_begin(a)
    a(f"s_load_dwordx2 s[4:5], s[0:1], {KA_X}")
    a(f"s_load_dwordx2 s[6:7], s[0:1], {KA_WQKV}")
    a(f"s_load_dwordx2 s[8:9], s[0:1], {KA_WIN}")
    a(f"s_load_dwordx2 s[10:11], s[0:1], {KA_WS}")
    VLANE, VC, VG = 1, 2, 3
    VDX, VDW0, VDW1 = 8, 9, 10
    XB, WB = 11, 12
    XA, WA = 16, 18
    ONE = 24
    S1, S2 = 28, 29
    UT = 32
    XF = 40
    WF = 72
    CSA = 104
    ACC = 192
    sRB, sCG, sW, sTY, sIX, sRH, sCQ = 24,25,26,27,28,29,30
    sXS, sWS, sPITCH, sMX, sMW = 31,32,33,34,35
    a(f"s_and_b32 s36, s2, 3")
    a(f"s_lshl_b32 s36, s36, 2")
    a(f"s_bfe_u32 s37, s2, 0x20003")
    a(f"s_add_u32 {s(sRB)}, s36, s37")
    a(f"s_bfe_u32 s36, s2, 0x10002")
    a(f"s_mul_i32 s36, s36, 7")
    a(f"s_lshr_b32 s37, s2, 5")
    a(f"s_add_u32 {s(sCG)}, s36, s37")
    a(f"v_lshrrev_b32 v4, 6, v0")
    a(f"v_and_b32 {v(VLANE)}, 63, v0")
    a(f"v_and_b32 {v(VC)}, 15, v0")
    a(f"v_readfirstlane_b32 {s(sW)}, v4")
    a(f"v_lshrrev_b32 {v(VG)}, 4, {v(VLANE)}")
    for cg in range(14):
        val = 0
        for w,(ty,ix) in enumerate(JOBS[cg]):
            val |= ((ty<<5)|ix) << (8*w)
        lab = a.newlabel("K1_J")
        a(f"s_cmp_lg_u32 {s(sCG)}, {cg}")
        a(f"s_cbranch_scc1 {lab}")
        a(f"s_mov_b32 s38, {val}")
        a.label(lab)
    a(f"s_lshr_b32 {s(sRH)}, {s(sW)}, 2")
    a(f"s_and_b32 {s(sCQ)}, {s(sW)}, 3")
    a(f"s_lshl_b32 s36, {s(sCQ)}, 3")
    a(f"s_lshr_b32 s36, s38, s36")
    a(f"s_and_b32 {s(sIX)}, s36, 31")
    a(f"s_bfe_u32 {s(sTY)}, s36, 0x30005")
    a(f"s_lshr_b32 s39, {s(sW)}, 1")
    a(f"s_lshl_b32 s36, s39, 3")
    a(f"s_lshr_b32 s36, s38, s36")
    a(f"s_and_b32 s40, s36, 31")
    a(f"s_bfe_u32 s41, s36, 0x30005")
    a(f"s_lshl_b32 s36, s40, 7")
    a(f"s_mul_i32 s37, s40, 120")
    a(f"s_mov_b32 {s(sWS)}, s36")
    a(f"s_add_u32 s42, s37, 1280")
    a(f"s_cmp_eq_u32 s41, {TK}"); a(f"s_cselect_b32 {s(sWS)}, s42, {s(sWS)}")
    a(f"s_add_u32 s42, s37, 2560")
    a(f"s_cmp_eq_u32 s41, {TV}"); a(f"s_cselect_b32 {s(sWS)}, s42, {s(sWS)}")
    a(f"s_add_u32 s42, s36, 1536")
    a(f"s_cmp_eq_u32 s41, {TZ2}"); a(f"s_cselect_b32 {s(sWS)}, s42, {s(sWS)}")
    a(f"s_cmp_lt_u32 s41, {TZ1}")
    a(f"s_movk_i32 {s(sPITCH)}, 3072")
    a(f"s_cselect_b32 {s(sPITCH)}, 3840, {s(sPITCH)}")
    a(f"v_lshrrev_b32 v4, 3, {v(VLANE)}")
    a(f"v_and_b32 v5, 7, {v(VLANE)}")
    a(f"v_bfe_u32 v6, v4, 1, 1")
    a(f"v_xor_b32 v6, v5, v6")
    a(f"v_mul_lo_u32 v7, v4, {s(sPITCH)}")
    a(f"v_lshl_add_u32 {v(VDW0)}, v6, 4, v7")
    a(f"s_and_b32 s36, {s(sW)}, 1")
    a(f"s_lshl_b32 s36, s36, 5")
    a(f"s_mul_i32 s36, s36, {s(sPITCH)}")
    a(f"s_add_u32 {s(sWS)}, {s(sWS)}, s36")
    a(f"s_lshl_b32 s36, {s(sCQ)}, 1")
    a(f"v_bfe_u32 v6, v4, 1, 1")
    a(f"v_or_b32 v6, s36, v6")
    a(f"v_xor_b32 v6, v5, v6")
    a(f"v_mul_u32_u24 v7, 1280, v4")
    a(f"v_lshl_add_u32 {v(VDX)}, v6, 4, v7")
    a(f"s_lshl_b32 s36, {s(sRB)}, 7")
    a(f"s_lshl_b32 s37, {s(sW)}, 4")
    a(f"s_add_u32 s36, s36, s37")
    a(f"s_mul_i32 {s(sXS)}, s36, 1280")
    a(f"s_lshl_b32 {s(sMX)}, {s(sW)}, 11")
    a(f"s_lshl_b32 {s(sMW)}, {s(sW)}, 12")
    a(f"s_add_u32 {s(sMW)}, {s(sMW)}, 16384")
    a("s_waitcnt lgkmcnt(0)")
    srd(a, 12, 4, 2048*1280)
    srd(a, 20, 10, WS_END)
    a(f"s_and_b32 s7, s7, 0xffff")
    a(f"s_and_b32 s9, s9, 0xffff")
    a(f"s_cmp_lt_u32 s41, {TZ1}")
    a(f"s_cselect_b32 s16, s6, s8")
    a(f"s_cselect_b32 s17, s7, s9")
    a(f"s_mov_b32 s18, {640*3072}")
    a(f"s_cselect_b32 s18, {640*3840}, s18")
    a(f"s_mov_b32 s19, 0x00020000")
    a(f"s_lshl_b32 s43, {s(sPITCH)}, 3")
    a(f"s_lshl_b32 s44, {s(sPITCH)}, 6")
    def dma(st):
        slot = (st%3)*STAGE
        for n in range(2):
            a(f"s_add_u32 m0, {s(sMX)}, {slot+1024*n}")
            a(f"s_add_u32 s45, {s(sXS)}, {10240*n+128*st}")
            a(f"buffer_load_dwordx4 {v(VDX)}, s[12:15], s45 offen lds")
        a(f"s_mov_b32 s45, {s(sWS)}")
        for n in range(4):
            a(f"s_add_u32 m0, {s(sMW)}, {slot+1024*n}")
            if n: a(f"s_add_u32 s45, s45, s43")
            else: a("s_nop 0")
            a(f"buffer_load_dwordx4 {v(VDW0)}, s[16:19], s45 offen lds")
        a(f"s_add_u32 {s(sWS)}, {s(sWS)}, s44")
    dma(0); dma(1)
    a(f"v_lshlrev_b32 v4, 2, v0")
    a(f"v_add_u32 v4, {LDS_ZS}, v4")
    a(f"v_mov_b32 v5, 0")
    a(f"v_cmp_gt_u32 vcc, 256, v0")
    a("s_and_saveexec_b64 s[46:47], vcc")
    a("ds_write_b32 v4, v5")
    a("s_mov_b64 exec, s[46:47]")
    a(f"v_lshrrev_b32 v4, 2, {v(VC)}")
    a(f"v_lshlrev_b32 v4, 4, v4")
    a(f"v_and_b32 v5, 3, {v(VC)}")
    a(f"v_add_u32 v4, v4, v5")
    a(f"s_lshl_b32 s36, {s(sRH)}, 6")
    a(f"v_add_u32 v4, s36, v4")
    a(f"v_lshlrev_b32 v4, 7, v4")
    a(f"v_lshrrev_b32 v5, 1, {v(VC)}")
    a(f"v_xor_b32 v5, v5, {v(VG)}")
    a(f"v_lshl_add_u32 {v(XB)}, v5, 4, v4")
    a(f"v_bfe_u32 v4, {v(VLANE)}, 2, 2")
    a(f"v_and_b32 v5, 3, {v(VLANE)}")
    a(f"v_lshl_add_u32 v6, {v(VG)}, 3, v4")
    a(f"v_lshlrev_b32 v6, 7, v6")
    a(f"s_lshl_b32 s36, {s(sCQ)}, 13")
    a(f"s_add_u32 s36, s36, 16384")
    a(f"v_add_u32 v6, s36, v6")
    a(f"v_lshrrev_b32 v4, 1, v4")
    a(f"v_xor_b32 v4, {s(sRH)}, v4")
    for f in range(4):
        a(f"v_lshlrev_b32 v7, 1, v5")
        if f>>1: a(f"v_or_b32 v7, 1, v7")
        a(f"v_xor_b32 v7, v7, v4")
        a(f"v_lshl_add_u32 {v(WB+f)}, v7, 4, v6")
        if f&1: a(f"v_add_u32 {v(WB+f)}, 8, {v(WB+f)}")
    for i in range(4): a(f"v_mov_b32 {v(ONE+i)}, 0x3f803f80")
    for i in range(4): a(f"v_mov_b32 {v(S1+i)}, 0")
    a(f"s_mov_b32 s48, 0xffff0000")
    for i in range(64): a(f"v_mov_b32 {v(ACC+i)}, 0")
    for i in range(8): a(f"v_mov_b32 {v(CSA+i)}, 0")
    for i in range(16): a(f"v_mov_b32 {v(XF+16+i)}, 0")
    for i in range(16): a(f"v_mov_b32 {v(WF+16+i)}, 0")
    for i in range(4): a(f"v_mov_b32 {v(116+i)}, 0")
    a(f"s_mov_b32 s49, 0"); a(f"s_mov_b32 s50, 0"); a(f"s_mov_b32 s51, {2*STAGE}")
    a(f"s_lshl_b32 s52, {s(sCQ)}, 9")
    a(f"s_add_u32 {s(sXS)}, {s(sXS)}, 256")
    a(f"s_cmp_eq_u32 {s(sTY)}, {TQ}"); a("s_cbranch_scc1 K1_MAIN_N")
    a(f"s_cmp_eq_u32 {s(sTY)}, {TZ1}"); a("s_cbranch_scc1 K1_MAIN_N")
    a("s_branch K1_MAIN_T")
    XS = 112
    XQ = 22
    sST, sSLOT, sDSL = 49, 50, 51
    def reads(sig, buf):
        for q in range(4):
            a(f"ds_read_b128 {v(XF+16*buf+4*q,4)}, {v(XA+sig)} offset:{q*512}")
        for f in range(4):
            for hh in range(2):
                if 'notr' in ABL: a(f"ds_read_b64 {v(WF+16*buf+4*f+2*hh,2)}, {v(XA+sig)} offset:{hh*512}")
                else: a(f"ds_read_b64_tr_b16 {v(WF+16*buf+4*f+2*hh,2)}, {v(WA+f)} offset:{sig*4096+hh*512}")
        a(f"ds_read_b128 {v(XS+4*buf,4)}, {v(XQ+sig)}")
    def dma_rt():
        a(f"s_add_u32 s46, {s(sMX)}, {s(sDSL)}")
        for n in range(2):
            a(f"s_add_u32 m0, s46, {1024*n}")
            a(f"s_add_u32 s45, {s(sXS)}, {10240*n}")
            a(f"buffer_load_dwordx4 {v(VDX)}, s[12:15], s45 offen lds")
        a(f"s_add_u32 s46, {s(sMW)}, {s(sDSL)}")
        a(f"s_mov_b32 s45, {s(sWS)}")
        for n in range(4):
            a(f"s_add_u32 m0, s46, {1024*n}")
            if n: a(f"s_add_u32 s45, s45, s43")
            else: a("s_nop 0")
            a(f"buffer_load_dwordx4 {v(VDW0)}, s[16:19], s45 offen lds")
        a(f"s_add_u32 {s(sWS)}, {s(sWS)}, s44")
        a(f"s_add_u32 {s(sXS)}, {s(sXS)}, 128")
    def compute(orient, buf):
        xb = XF+16*buf; wb = WF+16*buf; xs = XS+4*buf
        ops = []
        for d in range(4):
            ops += [f"v_lshlrev_b32 {v(UT+2*d)}, 16, {v(xs+d)}", f"v_and_b32 {v(UT+2*d+1)}, s48, {v(xs+d)}"]
        for e in range(8):
            ops += [f"v_add_f32 {v(S1+(e&1))}, {v(S1+(e&1))}, {v(UT+e)}", f"v_fmac_f32 {v(S1+2+(e&1))}, {v(UT+e)}, {v(UT+e)}"]
        k = 0
        for f in range(4):
            for q in range(4):
                acc = ACC + 4*(4*f+q)
                if orient == 'N': a(f"v_mfma_f32_16x16x32_bf16 {v(acc,4)}, {v(wb+4*f,4)}, {v(xb+4*q,4)}, {v(acc,4)}")
                else: a(f"v_mfma_f32_16x16x32_bf16 {v(acc,4)}, {v(xb+4*q,4)}, {v(wb+4*f,4)}, {v(acc,4)}")
                if 'nostat' not in ABL:
                    for o in ops[k:k+2]: a(o)
                k += 2
        for ff in range(2):
            if orient == 'N': a(f"v_mfma_f32_16x16x32_bf16 {v(CSA+4*ff,4)}, {v(wb+4*ff,4)}, {v(ONE,4)}, {v(CSA+4*ff,4)}")
            else: a(f"v_mfma_f32_16x16x32_bf16 {v(CSA+4*ff,4)}, {v(ONE,4)}, {v(wb+4*ff,4)}, {v(CSA+4*ff,4)}")
    def mainloop(orient):
        L = a.newlabel("K1_LOOP"); L2 = a.newlabel("K1_ND"); L3 = a.newlabel("K1_NW")
        a.label(L)
        a(f"s_cmp_lt_u32 {s(sST)}, {9 if 'nodma' not in ABL else 0}")
        a(f"s_cbranch_scc1 {L3}")
        a("s_waitcnt vmcnt(0)")
        a.label(L3)
        a("s_waitcnt vmcnt(6)")
        a("s_barrier")
        a(f"v_add_u32 {v(XA)}, {s(sSLOT)}, {v(XB)}")
        a(f"v_xor_b32 {v(XA+1)}, 64, {v(XA)}")
        a(f"v_add_u32 {v(XQ)}, s52, {v(XA)}")
        a(f"v_xor_b32 {v(XQ+1)}, 64, {v(XQ)}")
        for f in range(4): a(f"v_add_u32 {v(WA+f)}, {s(sSLOT)}, {v(WB+f)}")
        reads(0,0)
        a(f"s_cmp_lt_u32 {s(sST)}, {8 if 'nodma' not in ABL else 0}")
        a(f"s_cbranch_scc0 {L2}")
        dma_rt()
        a.label(L2)
        compute(orient, 1)
        reads(1,1)
        a("s_waitcnt lgkmcnt(13)")
        compute(orient, 0)
        a(f"s_mov_b32 {s(sDSL)}, {s(sSLOT)}")
        a(f"s_add_u32 {s(sSLOT)}, {s(sSLOT)}, {STAGE}")
        a(f"s_cmp_eq_u32 {s(sSLOT)}, {3*STAGE}")
        a(f"s_cselect_b32 {s(sSLOT)}, 0, {s(sSLOT)}")
        a(f"s_add_u32 {s(sST)}, {s(sST)}, 1")
        a("s_waitcnt lgkmcnt(0)")
        a(f"s_cmp_lt_u32 {s(sST)}, 10")
        a(f"s_cbranch_scc1 {L}")
        compute(orient, 1)
        a.nop(8)
        stamp(a,7)
        a(f"v_add_f32 {v(S1)}, {v(S1)}, {v(S1+1)}")
        a(f"v_add_f32 {v(S1+1)}, {v(S1+2)}, {v(S1+3)}")
        a(f"v_xor_b32 v4, 16, {v(VLANE)}")
        a(f"v_lshlrev_b32 v4, 2, v4")
        a(f"v_xor_b32 v5, 32, {v(VLANE)}")
        a(f"v_lshlrev_b32 v5, 2, v5")
        for k in range(2): a(f"ds_bpermute_b32 v{6+k}, v4, {v(S1+k)}")
        a("s_waitcnt lgkmcnt(0)")
        for k in range(2): a(f"v_add_f32 {v(S1+k)}, {v(S1+k)}, v{6+k}")
        for k in range(2): a(f"ds_bpermute_b32 v{6+k}, v5, {v(S1+k)}")
        a("s_waitcnt lgkmcnt(0)")
        for k in range(2): a(f"v_add_f32 {v(S1+k)}, {v(S1+k)}, v{6+k}")
        a(f"s_mov_b32 s36, {f32bits(1.0/640)}")
        a(f"s_mov_b32 s37, {f32bits(1e-5)}")
        a(f"v_mul_f32 {v(S1)}, s36, {v(S1)}")
        a(f"v_mul_f32 {v(S1+1)}, s36, {v(S1+1)}")
        a(f"v_fma_f32 {v(S1+1)}, -{v(S1)}, {v(S1)}, {v(S1+1)}")
        a(f"v_max_f32 {v(S1+1)}, 0, {v(S1+1)}")
        a(f"v_add_f32 {v(S1+1)}, s37, {v(S1+1)}")
        a(f"v_rsq_f32 {v(S1+2)}, {v(S1+1)}")
        a.nop(1)
        a(f"v_mul_f32 {v(S1+3)}, {v(S1)}, {v(S1+2)}")
        a(f"v_lshrrev_b32 v4, 7, {v(XB)}")
        a(f"s_lshl_b32 s36, {s(sCQ)}, 2")
        a(f"v_add_u32 v4, s36, v4")
        a(f"v_lshlrev_b32 v4, 3, v4")
        a(f"v_add_u32 v4, {LDS_ST}, v4")
        a(f"ds_write_b64 v4, {v(S1+2,2)}")
        a(f"s_lshl_b32 s36, {s(sCQ)}, 8")
        a(f"s_lshl_b32 s37, {s(sRH)}, 5")
        a(f"s_add_u32 s36, s36, s37")
        a(f"s_add_u32 s36, s36, {LDS_CS}")
        if orient == 'N':
            a(f"v_lshlrev_b32 v4, 6, {v(VG)}")
            a(f"v_add_u32 v4, s36, v4")
            a(f"ds_write_b128 v4, {v(CSA,4)}")
            a(f"ds_write_b128 v4, {v(CSA+4,4)} offset:16")
        else:
            a(f"v_lshrrev_b32 v4, 2, {v(VC)}")
            a(f"v_lshlrev_b32 v4, 6, v4")
            a(f"v_and_b32 v5, 3, {v(VC)}")
            a(f"v_lshl_add_u32 v4, v5, 2, v4")
            a(f"v_add_u32 v4, s36, v4")
            a(f"ds_write_b32 v4, {v(CSA)}")
            a(f"ds_write_b32 v4, {v(CSA+4)} offset:16")
        a("s_waitcnt lgkmcnt(0)")
        a("s_barrier")
        if 'noepi' in ABL: a("s_endpgm")
    sL, sEPS, sGB = 40, 41, 42
    VGA = 4
    def consts():
        a(f"s_mov_b32 {s(sL)}, {f32bits(LOG2E)}")
        a(f"s_mov_b32 {s(sEPS)}, {f32bits(1e-6)}")
        a(f"s_mov_b32 {s(sGB)}, {f32bits(GB)}")
        a(f"v_mov_b32 {v(VGA)}, {f32bits(GA)}")
    TMP = 160; PK = 36; SR = 112; CSR = 144
    a.label("K1_MAIN_N")
    mainloop('N')
    consts()
    a(f"v_lshrrev_b32 v5, 7, {v(XB)}")
    a(f"v_lshlrev_b32 v6, 3, v5")
    a(f"v_add_u32 v6, {LDS_ST}, v6")
    for q in range(4):
        a(f"ds_read_b64 {v(SR+2*q,2)}, v6 offset:{32*q}")
    a(f"s_lshl_b32 s36, {s(sCQ)}, 8")
    a(f"s_add_u32 s36, s36, {LDS_CS}")
    a(f"v_lshlrev_b32 v6, 6, {v(VG)}")
    a(f"v_add_u32 v6, s36, v6")
    a(f"s_lshl_b32 s37, {s(sRH)}, 5")
    a(f"v_add_u32 v7, s37, v6")
    a(f"v_xor_b32 v8, 32, v7")
    for f in range(4):
        a(f"ds_read_b128 {v(CSR+4*f,4)}, {'v7' if f<2 else 'v8'} offset:{16*(f&1)}")
    a(f"s_cmp_eq_u32 {s(sTY)}, {TQ}")
    a(f"s_movk_i32 s43, 1536")
    a(f"s_cselect_b32 s43, 1280, s43")
    a(f"s_cselect_b32 s44, {WS_PQ}, {WS_Z1}")
    a(f"s_lshl_b32 s45, {s(sIX)}, 7")
    a(f"s_add_u32 s44, s44, s45")
    a(f"s_lshl_b32 s45, {s(sRB)}, 7")
    a(f"v_add_u32 v5, s45, v5")
    a(f"v_mul_lo_u32 v5, v5, s43")
    a(f"v_lshl_add_u32 v5, {v(VG)}, 5, v5")
    a(f"s_lshl_b32 s37, {s(sRH)}, 4")
    a(f"v_add_u32 v5, s37, v5")
    a(f"v_xor_b32 v9, 16, v5")
    a(f"s_lshl_b32 s43, s43, 2")
    a("s_waitcnt lgkmcnt(0)")
    a(f"s_cmp_eq_u32 {s(sTY)}, {TQ}")
    a("s_cbranch_scc0 K1_EPI_Z1")
    def epiN(kind):
        for q in range(4):
            pk = PK + 8*(q%2)
            for f in range(4):
                xs = [ACC+4*(4*f+q)+r for r in range(4)]
                ts = [TMP+4*f+r for r in range(4)]
                for r in range(4): a(f"v_mul_f32 {v(ts[r])}, {v(SR+2*q+1)}, {v(CSR+4*f+r)}")
                for r in range(4): a(f"v_fma_f32 {v(xs[r])}, {v(xs[r])}, {v(SR+2*q)}, -{v(ts[r])}")
                if kind=='q': phi4(a, xs, ts, sL, sEPS)
                else: gelu4(a, xs, ts, sGB, VGA)
                a(f"v_cvt_pk_bf16_f32 {v(pk+2*f)}, {v(xs[0])}, {v(xs[1])}")
                a(f"v_cvt_pk_bf16_f32 {v(pk+2*f+1)}, {v(xs[2])}, {v(xs[3])}")
            a(f"buffer_store_dwordx4 {v(pk,4)}, v5, s[20:23], s44 offen")
            a(f"buffer_store_dwordx4 {v(pk+4,4)}, v9, s[20:23], s44 offen")
            if q<3: a(f"s_add_u32 s44, s44, s43")
    epiN('q')
    a("s_waitcnt vmcnt(0)") if STAMPS else None
    stamp(a,8); stamp_rt(a,9)
    a("s_waitcnt lgkmcnt(0)") if STAMPS else None
    stamp_flush(a, 10, 6*32, sW, 0)
    trace_end(a,0,sW)
    a("s_endpgm")
    a.label("K1_EPI_Z1")
    epiN('z1')
    trace_end(a,0,sW)
    a("s_endpgm")
    a.label("K1_MAIN_T")
    mainloop('T')
    consts()
    a(f"s_lshl_b32 s36, {s(sRH)}, 9")
    a(f"s_add_u32 s36, s36, {LDS_ST}")
    a(f"v_lshlrev_b32 v6, 7, {v(VG)}")
    a(f"v_add_u32 v6, s36, v6")
    for k in range(8):
        a(f"ds_read_b128 {v(SR+4*k,4)}, v6 offset:{16*k}")
    a(f"v_lshrrev_b32 v7, 2, {v(VC)}")
    a(f"v_lshlrev_b32 v7, 4, v7")
    a(f"v_and_or_b32 v7, {v(VC)}, 3, v7")
    a(f"s_lshl_b32 s36, {s(sCQ)}, 8")
    a(f"s_add_u32 s36, s36, {LDS_CS}")
    a(f"v_lshlrev_b32 v6, 2, v7")
    a(f"v_add_u32 v6, s36, v6")
    a(f"s_lshl_b32 s37, {s(sRH)}, 5")
    a(f"v_add_u32 v8, s37, v6")
    a(f"v_xor_b32 v9, 32, v8")
    for f in range(4):
        a(f"ds_read_b32 {v(CSR+f)}, {'v8' if f<2 else 'v9'} offset:{16*(f&1)}")
    a("s_waitcnt lgkmcnt(0)")
    def normT(f, q):
        xs = [ACC+4*(4*f+q)+r for r in range(4)]
        ts = [TMP+4*q+r for r in range(4)]
        for r in range(4): a(f"v_mul_f32 {v(ts[r])}, {v(SR+2*(4*q+r)+1)}, {v(CSR+f)}")
        for r in range(4): a(f"v_fma_f32 {v(xs[r])}, {v(xs[r])}, {v(SR+2*(4*q+r))}, -{v(ts[r])}")
        return xs, ts
    def packT(f, pk):
        for q in range(4):
            for h in range(2):
                a(f"v_cvt_pk_bf16_f32 {v(pk+2*q+h)}, {v(ACC+4*(4*f+q)+2*h)}, {v(ACC+4*(4*f+q)+2*h+1)}")
    a(f"s_cmp_eq_u32 {s(sTY)}, {TZ2}")
    a("s_cbranch_scc1 K1_EPI_Z2")
    a(f"s_mul_i32 s43, {s(sW)}, {64*KVPITCH}")
    a(f"v_mul_u32_u24 v5, {KVPITCH}, v7")
    a(f"v_lshl_add_u32 v5, {v(VG)}, 5, v5")
    a(f"v_add_u32 v5, s43, v5")
    a(f"s_mul_i32 s37, {s(sRH)}, {8*KVPITCH}")
    a(f"v_add_u32 v8, s37, v5")
    a(f"s_sub_u32 s37, {8*KVPITCH}, s37")
    a(f"v_add_u32 v9, s37, v5")
    a(f"s_cmp_eq_u32 {s(sTY)}, {TK}")
    a("s_cbranch_scc0 K1_EPI_V")
    def epiKV(kind):
        for f in range(4):
            for q in range(4):
                xs, ts = normT(f,q)
                if kind=='k': phi4(a, xs, ts, sL, sEPS)
            pk = PK + 8*(f%2)
            packT(f, pk)
            a(f"ds_write_b128 {'v8' if f<2 else 'v9'}, {v(pk,4)} offset:{4*(f&1)*KVPITCH}")
            a(f"ds_write_b128 {'v8' if f<2 else 'v9'}, {v(pk+4,4)} offset:{4*(f&1)*KVPITCH+16}")
    epiKV('k')
    a("s_branch K1_KVJOIN")
    a.label("K1_EPI_V")
    epiKV('v')
    a.label("K1_KVJOIN")
    a("s_waitcnt lgkmcnt(0)")
    a("s_barrier")
    a(f"s_cmp_ge_u32 {s(sW)}, 6")
    a("s_cbranch_scc1 K1_KVDONE")
    a(f"s_lshr_b32 s57, {s(sW)}, 1")
    a(f"s_mul_i32 s44, {s(sIX)}, 3")
    a(f"s_add_u32 s44, s44, s57")
    a(f"s_cmp_ge_u32 s44, 32")
    a("s_cbranch_scc1 K1_KVDONE")
    a(f"s_and_b32 s43, {s(sW)}, 1")
    a(f"s_mul_i32 s43, s43, {64*KVPITCH}")
    a(f"s_mul_i32 s45, s57, {20*KVPITCH}")
    a(f"s_add_u32 s43, s43, s45")
    a(f"v_mul_u32_u24 v5, {KVPITCH}, {v(VC)}")
    a(f"v_lshl_add_u32 v5, {v(VG)}, 4, v5")
    a(f"v_add_u32 v5, s43, v5")
    B = 40
    for u in range(4):
        for k in range(4):
            off = 16*(k&1)*KVPITCH + (2*64*KVPITCH if k>=2 else 0) + 64*(u&1) + (4*64*KVPITCH if u>=2 else 0)
            a(f"ds_read_b128 {v(B+16*u+4*k,4)}, v5 offset:{off}")
    a(f"v_mul_u32_u24 v6, 80, {v(VC)}")
    a(f"v_lshl_add_u32 v6, {v(VG)}, 4, v6")
    a(f"v_cmp_gt_u32 s[46:47], 4, {v(VC)}")
    a(f"v_cmp_eq_u32 s[48:49], 0, {v(VG)}")
    a(f"v_cmp_eq_u32 s[50:51], 0, {v(VC)}")
    a(f"s_and_b64 s[52:53], s[46:47], s[48:49]")
    a(f"s_and_b64 s[54:55], s[50:51], s[48:49]")
    a(f"s_lshl_b32 s45, {s(sRB)}, 5")
    a(f"s_add_u32 s45, s45, s44")
    a(f"s_mul_i32 s45, s45, 1680")
    a(f"s_add_u32 s45, s45, {WS_KVP}")
    D = 112
    for u in range(4):
        a(f"s_waitcnt lgkmcnt({4*(3-u)})")
        b = B+16*u
        pairs = [(b, b+8),(b, b+12),(b+4, b+8),(b+4, b+12),(b, ONE),(b+4, ONE)]
        for ti,(A,Bq) in enumerate(pairs):
            c = "0" if u==0 else v(D+4*ti,4)
            a(f"v_mfma_f32_16x16x32_bf16 {v(D+4*ti,4)}, {v(A,4)}, {v(Bq,4)}, {c}")
    a.nop(8)
    specs = [(None, 0), ("s[46:47]", 16*20), ("s[48:49]", 16), ("s[52:53]", 16*20+16), ("s[50:51]", 400), ("s[54:55]", 416)]
    for ti,(m,item0) in enumerate(specs):
        if m: a(f"s_mov_b64 exec, {m}")
        a(f"buffer_store_dwordx4 {v(D+4*ti,4)}, v6, s[20:23], s45 offen offset:{item0*4}")
    a("s_mov_b64 exec, -1")
    a.label("K1_KVDONE")
    trace_end(a,0,sW)
    a("s_endpgm")
    a.label("K1_EPI_Z2")
    for f in range(4):
        for q in range(4):
            xs, ts = normT(f,q)
            gelu4(a, xs, ts, sGB, VGA)
    a(f"s_lshl_b32 s44, {s(sRB)}, 2")
    a(f"s_lshl_b32 s45, {s(sRH)}, 1")
    a(f"s_add_u32 s44, s44, s45")
    a(f"v_lshrrev_b32 v9, 1, {v(VG)}")
    a(f"v_add_u32 v9, s44, v9")
    a(f"v_and_b32 v10, 1, {v(VG)}")
    a(f"v_lshlrev_b32 v10, 9, v10")
    a(f"v_and_b32 v11, 3, {v(VC)}")
    a(f"v_lshl_add_u32 v10, v11, 4, v10")
    a(f"s_lshl_b32 s44, {s(sIX)}, 4")
    a(f"v_lshrrev_b32 v11, 2, {v(VC)}")
    a(f"v_lshlrev_b32 v11, 2, v11")
    a(f"v_add_u32 v11, s44, v11")
    a(f"s_mov_b32 s45, {WS_Z2F}")
    for f in range(4):
        a(f"s_lshl_b32 s37, {s(sRH)}, 1")
        a(f"s_xor_b32 s37, s37, {f}")
        a(f"v_add_u32 v5, s37, v11")
        a(f"v_mul_u32_u24 v6, 2731, v5")
        a(f"v_lshrrev_b32 v6, 16, v6")
        a(f"v_mul_u32_u24 v7, 24, v6")
        a(f"v_sub_u32 v5, v5, v7")
        a(f"v_mul_u32_u24 v7, 43, v5")
        a(f"v_lshrrev_b32 v7, 8, v7")
        a(f"v_mul_u32_u24 v8, 6, v7")
        a(f"v_sub_u32 v5, v5, v8")
        a(f"v_lshl_add_u32 v6, v6, 6, v9")
        a(f"v_mul_u32_u24 v6, 6, v6")
        a(f"v_add_u32 v6, v6, v5")
        a(f"v_lshl_add_u32 v6, v6, 10, v10")
        a(f"v_lshl_add_u32 v6, v7, 6, v6")
        pk = PK + 8*(f%2)
        packT(f, pk)
        a(f"buffer_store_dwordx4 {v(pk,4)}, v6, s[20:23], s45 offen")
        a(f"buffer_store_dwordx4 {v(pk+4,4)}, v6, s[20:23], s45 offen offset:256")
    ST0 = 112
    for q in range(4):
        for r in range(4):
            i = 4*q+r
            A = [ACC+4*(4*f+q)+r for f in range(4)]
            a(f"v_add_f32 {v(ST0+2*i)}, {v(A[0])}, {v(A[1])}")
            a(f"v_mul_f32 {v(ST0+2*i+1)}, {v(A[0])}, {v(A[0])}")
            a(f"v_add_f32 {v(ST0+2*i)}, {v(ST0+2*i)}, {v(A[2])}")
            a(f"v_fmac_f32 {v(ST0+2*i+1)}, {v(A[1])}, {v(A[1])}")
            a(f"v_add_f32 {v(ST0+2*i)}, {v(ST0+2*i)}, {v(A[3])}")
            a(f"v_fmac_f32 {v(ST0+2*i+1)}, {v(A[2])}, {v(A[2])}")
            a(f"v_fmac_f32 {v(ST0+2*i+1)}, {v(A[3])}, {v(A[3])}")
    dpp_red16(a, list(range(ST0, ST0+32)))
    a(f"s_lshl_b32 s36, {s(sRH)}, 9")
    a(f"s_add_u32 s36, s36, {LDS_ZS}")
    a(f"v_lshlrev_b32 v5, 7, {v(VG)}")
    a(f"v_add_u32 v5, s36, v5")
    a(f"v_cmp_eq_u32 vcc, 0, {v(VC)}")
    a("s_and_saveexec_b64 s[46:47], vcc")
    for k in range(32):
        a(f"ds_add_f32 v5, {v(ST0+k)} offset:{4*k}")
    a("s_mov_b64 exec, s[46:47]")
    a("s_waitcnt lgkmcnt(0)")
    a("s_barrier")
    a(f"s_cmp_lg_u32 {s(sW)}, 0")
    a("s_cbranch_scc1 K1_Z2DONE")
    a(f"v_lshlrev_b32 v5, 4, {v(VLANE)}")
    a(f"v_add_u32 v6, {LDS_ZS}, v5")
    a(f"ds_read_b128 v[8:11], v6")
    a(f"s_lshr_b32 s43, {s(sIX)}, 2")
    a(f"s_lshl_b32 s43, s43, 14")
    a(f"s_add_u32 s43, s43, {WS_ST}")
    a(f"s_lshl_b32 s44, {s(sRB)}, 10")
    a(f"s_add_u32 s43, s43, s44")
    a("s_waitcnt lgkmcnt(0)")
    a(f"buffer_store_dwordx4 v[8:11], v5, s[20:23], s43 offen")
    a.label("K1_Z2DONE")
    trace_end(a,0,sW)
    a("s_endpgm")
    a.label("K1_PF")
    a(f"s_load_dwordx2 s[4:5], s[0:1], {KA_WSP}")
    a(f"s_load_dwordx2 s[6:7], s[0:1], {KA_WO}")
    a(f"s_load_dwordx2 s[8:9], s[0:1], {KA_WOUT}")
    a("s_sub_u32 s24, s2, 224")
    a("s_and_b32 s25, s24, 7")
    a("s_lshl_b32 s25, s25, 2")
    a("s_lshr_b32 s26, s24, 3")
    a("s_add_u32 s25, s25, s26")
    a("s_lshl_b32 s25, s25, 18")
    a("v_lshlrev_b32 v1, 4, v0")
    a("s_waitcnt lgkmcnt(0)")
    srd(a, 12, 4, 2048*4096)
    srd(a, 16, 6, 640*1280)
    srd(a, 20, 8, 768*1280)
    for i in range(32):
        a(f"buffer_load_dwordx4 {v(8+4*(i%16),4)}, v1, s[12:15], s25 offen")
        a("s_add_u32 s25, s25, 8192")
        if i%2==1: a("s_waitcnt vmcnt(0)")
    a("s_mul_i32 s25, s24, 25600")
    for i in range(4):
        a(f"buffer_load_dwordx4 {v(72+4*i,4)}, v1, s[16:19], s25 offen")
        a("s_add_u32 s25, s25, 8192")
    a("s_mul_i32 s25, s24, 30720")
    for i in range(4):
        a(f"buffer_load_dwordx4 {v(88+4*i,4)}, v1, s[20:23], s25 offen")
        a("s_add_u32 s25, s25, 8192")
    a("s_waitcnt vmcnt(0)")
    a.label("K1_END")
    a("s_endpgm")
```

```python
from common import *
import os
STWG = int(os.environ.get('STWG','60'))
NSIDE = 0
ABL2 = os.environ.get('ABL2','').split(',')
RING = 0
TAB = 131072
HLP = 147456
K2_LDS = 147456 + 4096 + 5120

def gen_k2(a):
    a.raw(".globl k2_kernel"); a.raw(".p2align 8"); a.raw(".type k2_kernel,@function"); a.label("k2_kernel")
    a(f"s_cmp_ge_u32 s2, 256"); a("s_cbranch_scc1 K2_END")
    stamp(a,0); stamp_rt(a,1); trace_begin(a)
    a(f"s_load_dwordx2 s[4:5], s[0:1], {KA_WSP}")
    a(f"s_load_dwordx2 s[6:7], s[0:1], {KA_BSP}")
    a(f"s_load_dwordx2 s[8:9], s[0:1], {KA_WO}")
    a(f"s_load_dwordx2 s[10:11], s[0:1], {KA_WS}")
    a(f"s_load_dwordx2 s[40:41], s[0:1], {KA_WOUT}")
    VLANE, VC, VG = 1,2,3
    sW = 26
    a(f"v_lshrrev_b32 v6, 6, v0")
    a(f"v_and_b32 {v(VLANE)}, 63, v0")
    a(f"v_and_b32 {v(VC)}, 15, v0")
    a(f"v_readfirstlane_b32 {s(sW)}, v6")
    a(f"v_lshrrev_b32 {v(VG)}, 4, {v(VLANE)}")
    a("s_waitcnt lgkmcnt(0)")
    srd(a, 20, 10, WS_END)
    a(f"s_cmp_ge_u32 {s(sW)}, 4"); a("s_cbranch_scc1 K2_HELP")
    srd(a, 12, 4, 2048*4096)
    srd(a, 16, 6, 4096)
    sTB, sFB = 24, 25
    a(f"s_and_b32 s27, s2, 7")
    a(f"s_lshl_b32 s27, s27, 2")
    a(f"s_bfe_u32 s28, s2, 0x20003")
    a(f"s_add_u32 {s(sTB)}, s27, s28")
    a(f"s_lshr_b32 {s(sFB)}, s2, 5")
    VZ0, VZ1, VR, VM_ = 4,5,6,7
    R = 8; MF = 16; T = 20
    VD0, VD1, VF0, VF1 = 24,25,26,27
    WF = 40; ZS = 72; DC = 144; ACC = 160
    sZ = 27; sWD = 28; sRING = 29
    vm = VM()
    a(f"v_lshlrev_b32 {v(VZ0)}, 4, {v(VLANE)}")
    a(f"v_add_u32 {v(VZ1)}, 4096, {v(VZ0)}")
    a(f"s_lshl_b32 s32, {s(sFB)}, 6")
    a(f"s_lshl_b32 s33, {s(sW)}, 4")
    a(f"s_add_u32 s32, s32, s33")
    a(f"s_mul_i32 {s(sZ)}, s32, 6144")
    a(f"s_add_u32 {s(sZ)}, {s(sZ)}, {WS_Z2F}")
    a(f"v_lshrrev_b32 v28, 3, {v(VLANE)}")
    a(f"v_and_b32 v29, 7, {v(VLANE)}")
    a(f"v_lshrrev_b32 v30, 1, v28")
    a(f"v_xor_b32 v31, v29, v30")
    a(f"v_lshlrev_b32 v28, 12, v28")
    a(f"v_lshl_add_u32 {v(VD0)}, v31, 4, v28")
    a(f"v_xor_b32 {v(VD1)}, 64, {v(VD0)}")
    a(f"s_lshl_b32 s32, {s(sTB)}, 18")
    a(f"s_lshl_b32 s33, {s(sW)}, 10")
    a(f"s_add_u32 {s(sWD)}, s32, s33")
    a(f"s_lshl_b32 {s(sRING)}, {s(sW)}, 15")
    a(f"v_lshrrev_b32 v28, 1, {v(VC)}")
    a(f"v_xor_b32 v28, v28, {v(VG)}")
    a(f"v_lshlrev_b32 v29, 7, {v(VC)}")
    a(f"v_lshl_add_u32 v28, v28, 4, v29")
    a(f"v_add_u32 {v(VF0)}, {s(sRING)}, v28")
    a(f"v_xor_b32 {v(VF1)}, 64, {v(VF0)}")
    def dma(slot):
        for n in range(8):
            a(f"s_add_u32 m0, {s(sRING)}, {(slot%4)*8192+n*1024}")
            a(f"s_add_u32 s34, {s(sWD)}, {n*32768+slot*128}")
            a(f"buffer_load_dwordx4 {v(VD0 if n%2==0 else VD1)}, s[12:15], s34 offen lds")
            vm.issue(('w',slot))
    def zloads(u):
        b = ZS + 24*(u%3)
        for p in range(6):
            if p<4: a(f"buffer_load_dwordx4 {v(b+4*p,4)}, {v(VZ0)}, s[20:23], {s(sZ)} offen offset:{p*1024}")
            else:   a(f"buffer_load_dwordx4 {v(b+4*p,4)}, {v(VZ1)}, s[20:23], {s(sZ)} offen offset:{(p-4)*1024}")
            vm.issue(('z',u))
        a(f"s_add_u32 {s(sZ)}, {s(sZ)}, 6144")
    a(f"v_lshlrev_b32 v28, 6, {v(VLANE)}")
    a(f"s_lshl_b32 s32, {s(sW)}, 12")
    a(f"s_add_u32 s32, s32, {WS_ST}")
    SA = 144; SL = 160
    for z in range(3):
        for k in range(4):
            a(f"buffer_load_dwordx4 {v(SL+16*z+4*k,4)}, v28, s[20:23], s32 offen offset:{16*k}")
            vm.issue('s0')
        a(f"s_add_u32 s32, s32, 16384")
    if 'late' not in ABL2: dma(0); zloads(0)
    a(f"s_waitcnt vmcnt({vm.need('s0')})")
    if 'late' in ABL2: dma(0); zloads(0)
    for i in range(16):
        a(f"v_add_f32 {v(SA+i)}, {v(SL+i)}, {v(SL+16+i)}")
    for i in range(16):
        a(f"v_add_f32 {v(SA+i)}, {v(SA+i)}, {v(SL+32+i)}")
    stamp(a,2)
    a(f"s_mov_b32 s33, {f32bits(1.0/768)}")
    a(f"s_mov_b32 s34, {f32bits(1e-5)}")
    a(f"s_mov_b32 s35, 0xffff0000")
    for i in range(8):
        a(f"v_mul_f32 {v(SL+i)}, s33, {v(SA+2*i)}")
        a(f"v_mul_f32 {v(SL+8+i)}, s33, {v(SA+2*i+1)}")
    for i in range(8): a(f"v_fma_f32 {v(SL+8+i)}, -{v(SL+i)}, {v(SL+i)}, {v(SL+8+i)}")
    for i in range(8): a(f"v_max_f32 {v(SL+8+i)}, 0, {v(SL+8+i)}")
    for i in range(8): a(f"v_add_f32 {v(SL+8+i)}, s34, {v(SL+8+i)}")
    for i in range(8): a(f"v_rsq_f32 {v(SL+8+i)}, {v(SL+8+i)}")
    for i in range(4): a(f"v_cvt_pk_bf16_f32 {v(SL+16+i)}, {v(SL+2*i)}, {v(SL+2*i+1)}")
    for i in range(4):
        a(f"v_lshlrev_b32 {v(SL+24+2*i)}, 16, {v(SL+16+i)}")
        a(f"v_and_b32 {v(SL+24+2*i+1)}, s35, {v(SL+16+i)}")
    for i in range(8): a(f"v_sub_f32 {v(SL+24+i)}, {v(SL+i)}, {v(SL+24+i)}")
    for i in range(4): a(f"v_cvt_pk_bf16_f32 {v(SL+20+i)}, {v(SL+24+2*i)}, {v(SL+24+2*i+1)}")
    a(f"s_lshl_b32 s36, {s(sW)}, 12")
    a(f"s_add_u32 s36, s36, {TAB}")
    a(f"v_lshlrev_b32 v28, 5, {v(VLANE)}")
    a(f"v_add_u32 v28, s36, v28")
    a(f"v_lshlrev_b32 v29, 4, {v(VLANE)}")
    a(f"v_add_u32 v29, s36, v29")
    a(f"ds_write_b128 v28, {v(SL+8,4)}")
    a(f"ds_write_b128 v28, {v(SL+12,4)} offset:16")
    a(f"ds_write_b128 v29, {v(SL+16,4)} offset:2048")
    a(f"ds_write_b128 v29, {v(SL+20,4)} offset:3072")
    a(f"v_lshlrev_b32 {v(VR)}, 5, {v(VG)}")
    a(f"v_add_u32 {v(VR)}, s36, {v(VR)}")
    a(f"v_and_b32 v28, 1, {v(VC)}")
    a(f"v_lshlrev_b32 v28, 10, v28")
    a(f"v_lshl_add_u32 v28, {v(VG)}, 4, v28")
    a(f"v_add_u32 {v(VM_)}, s36, v28")
    zloads(1); dma(1); zloads(2)
    a("s_waitcnt lgkmcnt(0)")
    def rread(u):
        a(f"ds_read_b128 {v(R,4)}, {v(VR)} offset:{128*u}")
        a(f"ds_read_b128 {v(R+4,4)}, {v(VR)} offset:{128*u+16}")
    def mread(u):
        a(f"ds_read_b128 {v(MF,4)}, {v(VM_)} offset:{2048+64*u}")
    def wread(u):
        b = WF + 16*(u%2)
        slot = u>>1
        for q in range(4):
            a(f"ds_read_b128 {v(b+4*q,4)}, {v(VF0 if u%2==0 else VF1)} offset:{(slot%4)*8192+q*2048}")
    def scale_ops(u):
        b = WF + 16*(u%2)
        ops=[]
        for q in range(4):
            for d in range(4):
                w = b+4*q+d
                t0, t1 = T+2*(d%2), T+2*(d%2)+1
                ops += [f"v_lshlrev_b32 {v(t0)}, 16, {v(w)}", f"v_and_b32 {v(t1)}, s35, {v(w)}",
                        f"v_mul_f32 {v(t0)}, {v(t0)}, {v(R+2*d)}", f"v_mul_f32 {v(t1)}, {v(t1)}, {v(R+2*d+1)}",
                        f"v_cvt_pk_bf16_f32 {v(w)}, {v(t0)}, {v(t1)}"]
        return ops
    rread(0); mread(0)
    a(f"s_waitcnt vmcnt({vm.need(('w',0))})")
    wread(0)
    a("s_waitcnt lgkmcnt(0)")
    for o in scale_ops(0): a(o)
    rread(1); wread(1)
    dma(2); dma(3)
    stamp(a,3)
    for u in range(16):
        b = WF + 16*(u%2)
        zb = ZS + 24*(u%3)
        a(f"s_waitcnt vmcnt({vm.need(('z',u))})")
        for q in range(4):
            c = "0" if u==0 else v(DC+4*q,4)
            a(f"v_mfma_f32_16x16x32_bf16 {v(DC+4*q,4)}, {v(MF,4)}, {v(b+4*q,4)}, {c}")
        if u+1<16: mread(u+1)
        ops = scale_ops(u+1) if u+1<16 else []
        k = 0
        for p in range(6):
            for q in range(4):
                acc = ACC+4*(4*p+q)
                c = "0" if u==0 else v(acc,4)
                a(f"v_mfma_f32_16x16x32_bf16 {v(acc,4)}, {v(zb+4*p,4)}, {v(b+4*q,4)}, {c}")
                if p==0 and q==3 and ops: a("s_waitcnt lgkmcnt(1)")
                if p>=1:
                    for o in ops[k:k+4]: a(o)
                    k += 4
        if u+2<16:
            rread(u+2)
            if (u+2)%2==0: a(f"s_waitcnt vmcnt({vm.need(('w',(u+2)>>1))})")
            wread(u+2)
        if u+1<16: a(f"s_waitcnt lgkmcnt({6 if u+2<16 else 0})")
        if u%2==0 and (u>>1)+4 < 8: dma((u>>1)+4)
        if u+3<16: zloads(u+3)
        if u in (0,4,10): stamp(a, {0:4,4:5,10:6}[u])
    stamp(a,7)
    Z1R = 24
    BS = 36
    a(f"s_lshl_b32 s32, {s(sTB)}, 6")
    a(f"s_lshl_b32 s33, {s(sW)}, 4")
    a(f"s_add_u32 s32, s32, s33")
    a(f"v_add_u32 v20, s32, {v(VC)}")
    a(f"v_lshlrev_b32 v21, 1, v20")
    a(f"buffer_load_ushort {v(BS)}, v21, s[16:19], 0 offen")
    a(f"v_mul_u32_u24 v21, 1536, v20")
    a(f"v_mul_u32_u24 v22, 48, {v(VG)}")
    a(f"v_add_u32 v21, v21, v22")
    a(f"s_mul_i32 s34, {s(sFB)}, 192")
    a(f"s_add_u32 s34, s34, {WS_Z1}")
    for m in range(3):
        a(f"buffer_load_dwordx4 {v(Z1R+4*m,4)}, v21, s[20:23], s34 offen offset:{16*m}")
    a("s_barrier")
    a(f"v_lshlrev_b32 v22, 3, {v(VLANE)}")
    for q in range(4):
        lab = a.newlabel("K2_SK")
        a(f"s_cmp_eq_u32 {s(sW)}, {q}")
        a(f"s_cbranch_scc1 {lab}")
        a(f"s_cmp_gt_u32 {s(sW)}, {q}")
        a(f"s_cselect_b32 s36, 1, 0")
        a(f"s_sub_u32 s36, {s(sW)}, s36")
        a(f"s_add_u32 s36, s36, {3*q}")
        a(f"s_mul_i32 s37, s36, 6144")
        a(f"v_add_u32 v23, s37, {v(VZ0)}")
        for p in range(6):
            a(f"ds_write_b128 v23, {v(ACC+4*(4*p+q),4)} offset:{p*1024}")
        a(f"s_lshl_b32 s37, s36, 9")
        a(f"v_add_u32 v23, s37, v22")
        a(f"v_add_u32 v23, 73728, v23")
        a(f"ds_write_b64 v23, {v(DC+4*q,2)}")
        a.label(lab)
    FIN = 40
    for q in range(4):
        lab = a.newlabel("K2_MV")
        a(f"s_cmp_lg_u32 {s(sW)}, {q}")
        a(f"s_cbranch_scc1 {lab}")
        for p in range(6):
            for r in range(4):
                a(f"v_mov_b32 {v(FIN+4*p+r)}, {v(ACC+4*(4*p+q)+r)}")
        a(f"v_mov_b32 {v(FIN+24)}, {v(DC+4*q)}")
        a(f"v_mov_b32 {v(FIN+25)}, {v(DC+4*q+1)}")
        a.label(lab)
    a("s_waitcnt lgkmcnt(0)")
    a("s_barrier")
    a(f"s_mul_i32 s37, {s(sW)}, {3*6144}")
    a(f"v_add_u32 v23, s37, {v(VZ0)}")
    a(f"s_mul_i32 s37, {s(sW)}, {3*512}")
    a(f"s_add_u32 s37, s37, 73728")
    a(f"v_add_u32 v22, s37, v22")
    RD = 72
    for src in range(3):
        for p in range(6):
            a(f"ds_read_b128 {v(RD+28*src+4*p,4)}, v23 offset:{src*6144+p*1024}")
        a(f"ds_read_b64 {v(RD+28*src+24,2)}, v22 offset:{src*512}")
    a("s_waitcnt lgkmcnt(0)")
    for src in range(3):
        for i in range(26):
            a(f"v_add_f32 {v(FIN+i)}, {v(FIN+i)}, {v(RD+28*src+i)}")
    a("s_waitcnt vmcnt(0)")
    a(f"v_lshlrev_b32 {v(BS)}, 16, {v(BS)}")
    a(f"v_add_f32 {v(FIN+24)}, {v(FIN+24)}, {v(FIN+25)}")
    a(f"v_sub_f32 {v(BS)}, {v(BS)}, {v(FIN+24)}")
    a(f"s_lshl_b32 s32, {s(sTB)}, 2")
    a(f"s_add_u32 s32, s32, {s(sW)}")
    a(f"s_mul_i32 s32, s32, {44*1024}")
    a(f"s_add_u32 s32, s32, {WS_ACT}")
    a(f"s_mul_i32 s33, {s(sFB)}, 12")
    a(f"s_add_u32 s33, s33, 80")
    a(f"v_mul_u32_u24 v20, 3, {v(VG)}")
    a(f"v_add_u32 v20, s33, v20")
    for m in range(3):
        a(f"v_add_u32 v21, {m}, v20")
        a(f"v_lshlrev_b32 v21, 8, v21")
        a(f"v_lshl_add_u32 v21, {v(VC)}, 4, v21")
        for hh in range(2):
            p = 2*m+hh
            zr = Z1R+4*m+2*hh
            a(f"v_lshlrev_b32 v68, 16, {v(zr)}")
            a(f"v_and_b32 v69, s35, {v(zr)}")
            a(f"v_lshlrev_b32 v70, 16, {v(zr+1)}")
            a(f"v_and_b32 v71, s35, {v(zr+1)}")
            for r in range(4): a(f"v_add_f32 {v(FIN+4*p+r)}, {v(FIN+4*p+r)}, {v(BS)}")
            for r in range(4): a(f"v_mul_f32 {v(FIN+4*p+r)}, {v(FIN+4*p+r)}, v{68+r}")
            a(f"v_cvt_pk_bf16_f32 {v(RD+4*m+2*hh)}, {v(FIN+4*p)}, {v(FIN+4*p+1)}")
            a(f"v_cvt_pk_bf16_f32 {v(RD+4*m+2*hh+1)}, {v(FIN+4*p+2)}, {v(FIN+4*p+3)}")
        a(f"buffer_store_dwordx4 {v(RD+4*m,4)}, v21, s[20:23], s32 offen")
    a("s_waitcnt vmcnt(0)") if STAMPS else None
    stamp(a,8); stamp_rt(a,9)
    a("s_waitcnt lgkmcnt(0)") if STAMPS else None
    stamp_flush(a, 10, STWG, sW, 0)
    trace_end(a,1,sW)
    a("s_endpgm")

    a.label("K2_HELP")
    if 'nohelp' in ABL2: a("s_endpgm")
    if 'prio' in ABL2: a("s_setprio 2")
    a(f"s_mov_b32 s35, 0xffff0000")
    a(f"s_cmp_eq_u32 {s(sW)}, 5"); a("s_cbranch_scc1 K2_HM")
    a(f"s_cmp_eq_u32 {s(sW)}, 6"); a("s_cbranch_scc1 K2_HW")
    ZP = 8; PQ = 136
    a(f"s_and_b32 s24, s2, 7")
    a(f"s_lshr_b32 s25, s2, 3")
    a(f"v_min_u32 v4, 19, {v(VLANE)}")
    a(f"v_mul_u32_u24 v5, 13108, v4")
    a(f"v_lshrrev_b32 v5, 16, v5")
    a(f"v_mul_u32_u24 v6, 5, v5")
    a(f"v_sub_u32 v6, v4, v6")
    a(f"v_mul_u32_u24 v5, 1680, v5")
    a(f"v_lshl_add_u32 v5, v6, 4, v5")
    a(f"s_mul_i32 s27, s24, {4*1680}")
    a(f"s_add_u32 s27, s27, {WS_KVP+1600}")
    for rb in range(16):
        a(f"buffer_load_dwordx4 {v(ZP+4*rb,4)}, v5, s[20:23], s27 offen")
        a(f"s_add_u32 s27, s27, 53760")
    a(f"s_lshl_b32 s27, s25, 6")
    a(f"v_add_u32 v7, s27, {v(VLANE)}")
    a(f"v_mul_u32_u24 v4, 1280, v7")
    a(f"s_mul_i32 s27, s24, 160")
    for k in range(10):
        a(f"buffer_load_dwordx4 {v(PQ+4*k,4)}, v4, s[20:23], s27 offen offset:{16*k}")
    a("s_waitcnt vmcnt(10)")
    for rb in range(1,16):
        for i in range(4): a(f"v_add_f32 {v(ZP+i)}, {v(ZP+i)}, {v(ZP+4*rb+i)}")
    a(f"v_lshlrev_b32 v4, 4, {v(VLANE)}")
    a(f"v_add_u32 v4, {HLP}, v4")
    a(f"v_cmp_gt_u32 vcc, 20, {v(VLANE)}")
    a("s_and_saveexec_b64 s[36:37], vcc")
    a(f"ds_write_b128 v4, {v(ZP,4)}")
    a("s_mov_b64 exec, s[36:37]")
    a("s_waitcnt lgkmcnt(0)")
    ZR = 176
    a(f"v_mov_b32 v4, {HLP}")
    for k in range(20):
        a(f"ds_read_b128 {v(ZR+4*k,4)}, v4 offset:{16*k}")
    a(f"s_mov_b32 s39, {f32bits(1e-6)}")
    a(f"v_lshrrev_b32 v4, 4, v7")
    a(f"v_mul_u32_u24 v4, 45056, v4")
    a(f"v_lshl_add_u32 v4, {v(VC)}, 4, v4")
    a(f"s_mul_i32 s33, s24, 2560")
    a(f"s_add_u32 s33, s33, {WS_ACT}")
    a("s_waitcnt vmcnt(0) lgkmcnt(0)")
    U = 110
    for hh in range(4):
        for m in range(10):
            a(f"v_lshlrev_b32 {v(U+2*m)}, 16, {v(PQ+10*hh+m)}")
            a(f"v_and_b32 {v(U+2*m+1)}, s35, {v(PQ+10*hh+m)}")
        a(f"v_mul_f32 v130, {v(U)}, {v(ZR+20*hh)}")
        a(f"v_mul_f32 v131, {v(U+1)}, {v(ZR+20*hh+1)}")
        for d in range(2,20):
            a(f"v_fmac_f32 v{130+d%2}, {v(U+d)}, {v(ZR+20*hh+d)}")
        a("v_add_f32 v130, v130, v131")
        a("v_add_f32 v130, s39, v130")
        a("v_rcp_f32 v130, v130")
        a.nop(1)
        for d in range(20): a(f"v_mul_f32 {v(U+d)}, {v(U+d)}, v130")
        for m in range(10): a(f"v_cvt_pk_bf16_f32 {v(PQ+10*hh+m)}, {v(U+2*m)}, {v(U+2*m+1)}")
    for k in range(10):
        a(f"buffer_store_dwordx4 {v(PQ+4*k,4)}, v4, s[20:23], s33 offen offset:{256*k}")
    trace_end(a,1,sW)
    a("s_endpgm")
    a.label("K2_HM")
    srd(a, 12, 8, 640*1280)
    a(f"s_and_b32 s28, s2, 31")
    a(f"s_lshr_b32 s29, s2, 5")
    KP = 8; KP2 = 72
    HKV = HLP + 1024
    HWO = HLP + 4096
    a(f"s_mul_i32 s32, s28, {20*1280}")
    a(f"s_mul_i32 s33, s29, 160")
    a(f"s_add_u32 s32, s32, s33")
    for n in range(5):
        a(f"v_add_u32 v4, {64*n}, {v(VLANE)}")
        a(f"v_mul_u32_u24 v5, 6554, v4")
        a(f"v_lshrrev_b32 v5, 16, v5")
        a(f"v_mul_u32_u24 v6, 10, v5")
        a(f"v_sub_u32 v6, v4, v6")
        a(f"v_mul_u32_u24 v5, 1280, v5")
        a(f"v_lshl_add_u32 v5, v6, 4, v5")
        a(f"s_mov_b32 m0, {HWO+1024*n}")
        a("s_nop 0")
        a(f"buffer_load_dwordx4 v5, s[12:15], s32 offen lds")
    a(f"v_lshlrev_b32 v5, 4, {v(VLANE)}")
    a(f"v_add_u32 v6, 1024, v5")
    a(f"v_min_u32 v6, 1584, v6")
    a(f"s_mul_i32 s27, s28, 1680")
    a(f"s_add_u32 s27, s27, {WS_KVP}")
    for rb in range(16):
        a(f"buffer_load_dwordx4 {v(KP+4*rb,4)}, v5, s[20:23], s27 offen")
        a(f"buffer_load_dwordx4 {v(KP2+4*rb,4)}, v6, s[20:23], s27 offen")
        a(f"s_add_u32 s27, s27, 53760")
    for i in range(4): a(f"v_mov_b32 v{140+i}, 0")
    a(f"v_add_u32 v7, {HKV+1600}, v5")
    a(f"v_cmp_gt_u32 vcc, 60, {v(VLANE)}")
    a("s_and_saveexec_b64 s[36:37], vcc")
    a(f"ds_write_b128 v7, v[140:143]")
    a("s_mov_b64 exec, s[36:37]")
    a(f"v_mul_u32_u24 v136, 640, {v(VG)}")
    a(f"v_lshl_add_u32 v136, {v(VC)}, 2, v136")
    a(f"v_add_u32 v136, {HKV}, v136")
    a(f"v_bfe_u32 v137, {v(VLANE)}, 2, 2")
    a(f"v_lshl_add_u32 v137, {v(VG)}, 3, v137")
    a(f"v_mul_u32_u24 v137, 160, v137")
    a(f"v_and_b32 v138, 3, {v(VLANE)}")
    a(f"v_mul_u32_u24 v138, 40, v138")
    a(f"v_add_u32 v137, v137, v138")
    a(f"v_add_u32 v137, {HWO}, v137")
    a("s_waitcnt vmcnt(0)")
    for rb in range(1,16):
        for i in range(4): a(f"v_add_f32 {v(KP+i)}, {v(KP+i)}, {v(KP+4*rb+i)}")
        for i in range(4): a(f"v_add_f32 {v(KP2+i)}, {v(KP2+i)}, {v(KP2+4*rb+i)}")
    a(f"v_add_u32 v5, {HKV}, v5")
    a(f"v_add_u32 v6, {HKV}, v6")
    a(f"ds_write_b128 v5, {v(KP,4)}")
    a(f"ds_write_b128 v6, {v(KP2,4)}")
    BF = 144
    for p in range(5):
        for hh in range(2):
            a(f"ds_read_b64_tr_b16 {v(BF+4*p+2*hh,2)}, v137 offset:{8*p+640*hh}")
    a("s_waitcnt lgkmcnt(0)")
    for fr in range(2):
        for t in range(8):
            a(f"ds_read_b32 v{8+8*fr+t}, v136 offset:{80*t+64*fr}")
    a(f"s_mul_i32 s33, s28, 20")
    a(f"s_mul_i32 s34, s29, {44*5120}")
    a(f"s_add_u32 s34, s34, {WS_WCT}")
    for fr in range(2):
        a(f"v_lshlrev_b32 v30, 2, {v(VG)}")
        a(f"v_add_u32 v30, s33, v30")
        if fr: a(f"v_add_u32 v30, 16, v30")
        a(f"v_lshrrev_b32 v31, 5, v30")
        a(f"v_mul_u32_u24 v31, 5120, v31")
        a(f"v_bfe_u32 v32, v30, 3, 2")
        a(f"v_lshl_add_u32 v31, v32, 8, v31")
        a(f"v_and_b32 v32, 7, v30")
        a(f"v_lshl_add_u32 v31, v32, 1, v31")
        a(f"v_lshl_add_u32 v{34+fr}, {v(VC)}, 4, v31")
    a("s_waitcnt lgkmcnt(0)")
    for fr in range(2):
        for d in range(4):
            a(f"v_cvt_pk_bf16_f32 v{24+4*fr+d if False else 40+4*fr+d}, v{8+8*fr+2*d}, v{8+8*fr+2*d+1}")
    a.nop(2)
    DM = 48
    for fr in range(2):
        for p in range(5):
            a(f"v_mfma_f32_16x16x32_bf16 {v(DM+4*(5*fr+p),4)}, {v(40+4*fr,4)}, {v(BF+4*p,4)}, 0")
    a.nop(8)
    a(f"v_cmp_eq_u32 s[36:37], 0, {v(VG)}")
    for fr in range(2):
        if fr: a("s_mov_b64 exec, s[36:37]")
        for p in range(5):
            t = DM+4*(5*fr+p)
            a(f"v_cvt_pk_bf16_f32 {v(t)}, {v(t)}, {v(t+1)}")
            a(f"v_cvt_pk_bf16_f32 {v(t+1)}, {v(t+2)}, {v(t+3)}")
            if p<4: a(f"buffer_store_dwordx2 {v(t,2)}, v{34+fr}, s[20:23], s34 offen offset:{1024*p}")
            else:
                a(f"s_add_u32 s38, s34, 4096")
                a(f"buffer_store_dwordx2 {v(t,2)}, v{34+fr}, s[20:23], s38 offen")
    a("s_mov_b64 exec, -1")
    trace_end(a,1,sW)
    a("s_endpgm")
    a.label("K2_HW")
    srd(a, 16, 40, 768*1280)
    a(f"s_mul_i32 s33, s2, 60")
    a(f"v_add_u32 v110, s33, {v(VLANE)}")
    a(f"v_mul_u32_u24 v111, 6554, v110")
    a(f"v_lshrrev_b32 v111, 20, v111")
    a(f"v_mul_u32_u24 v112, 160, v111")
    a(f"v_sub_u32 v112, v110, v112")
    a(f"v_mul_u32_u24 v113, {8*1280}, v111")
    a(f"v_lshl_add_u32 v113, v112, 3, v113")
    TR = 136
    for j in range(8):
        off = j*1280
        if off < 4096: a(f"buffer_load_dwordx2 {v(TR+2*j,2)}, v113, s[16:19], 0 offen offset:{off}")
        else:
            a(f"s_movk_i32 s34, {off}")
            a(f"buffer_load_dwordx2 {v(TR+2*j,2)}, v113, s[16:19], s34 offen")
    a(f"s_mov_b32 s30, 0x05040100")
    a(f"s_mov_b32 s31, 0x07060302")
    a(f"s_mov_b32 s32, {WS_WCT}")
    a(f"v_mul_u32_u24 v8, 3277, v112")
    a(f"v_lshrrev_b32 v8, 16, v8")
    a(f"v_mul_u32_u24 v9, 20, v8")
    a(f"v_sub_u32 v9, v112, v9")
    a(f"v_mul_u32_u24 v10, 52, v9")
    a(f"v_lshrrev_b32 v10, 8, v10")
    a(f"v_mul_u32_u24 v11, 5, v10")
    a(f"v_sub_u32 v11, v9, v11")
    a(f"v_add_u32 v111, 80, v111")
    a(f"v_lshrrev_b32 v12, 2, v111")
    a(f"v_and_b32 v13, 3, v111")
    a(f"v_mul_u32_u24 v8, 44, v8")
    a(f"v_add_u32 v8, v8, v12")
    a(f"v_mul_u32_u24 v8, 5, v8")
    a(f"v_add_u32 v8, v8, v11")
    a(f"v_lshlrev_b32 v8, 10, v8")
    a(f"v_lshl_add_u32 v8, v13, 8, v8")
    a(f"v_lshl_add_u32 v8, v10, 6, v8")
    a("s_waitcnt vmcnt(0)")
    for f in range(4):
        sel = 30 if (f&1)==0 else 31
        for d in range(4):
            a(f"v_perm_b32 {v(TR+16+4*f+d)}, {v(TR+2*(2*d+1)+(f>>1))}, {v(TR+2*(2*d)+(f>>1))}, {s(sel)}")
    a(f"v_cmp_gt_u32 vcc, 60, {v(VLANE)}")
    a("s_and_saveexec_b64 s[34:35], vcc")
    for f in range(4):
        a(f"buffer_store_dwordx4 {v(TR+16+4*f,4)}, v8, s[20:23], s32 offen offset:{16*f}")
    trace_end(a,1,sW)
    a.label("K2_END")
    a("s_endpgm")
```

```python
from common import *

def gen_k3(a):
    a.raw(".globl k3_kernel"); a.raw(".p2align 8"); a.raw(".type k3_kernel,@function"); a.label("k3_kernel")
    a("s_cmp_ge_u32 s2, 256"); a("s_cbranch_scc1 K3_END")
    stamp(a,0); stamp_rt(a,1); trace_begin(a)
    a(f"s_load_dwordx2 s[4:5], s[0:1], {KA_X}")
    a(f"s_load_dwordx2 s[6:7], s[0:1], {KA_OUT}")
    a(f"s_load_dwordx2 s[10:11], s[0:1], {KA_WS}")
    VLANE, VC, VG, VO0, VO1 = 1,2,3,4,5
    sSB, sNB, sW = 24,25,26
    sA = 27; sBq = 28
    NST = 4
    XR = 8
    STG = 20
    ACC = STG + NST*36
    a(f"s_and_b32 s27, s2, 7")
    a(f"s_lshl_b32 s27, s27, 2")
    a(f"s_bfe_u32 s28, s2, 0x20003")
    a(f"s_add_u32 {s(sSB)}, s27, s28")
    a(f"s_lshr_b32 {s(sNB)}, s2, 5")
    a(f"v_lshrrev_b32 v6, 6, v0")
    a(f"v_and_b32 {v(VLANE)}, 63, v0")
    a(f"v_and_b32 {v(VC)}, 15, v0")
    a(f"v_readfirstlane_b32 {s(sW)}, v6")
    a(f"v_lshrrev_b32 {v(VG)}, 4, {v(VLANE)}")
    a(f"v_lshlrev_b32 {v(VO0)}, 4, {v(VLANE)}")
    a(f"v_add_u32 {v(VO1)}, 4096, {v(VO0)}")
    a(f"s_mul_i32 s32, {s(sNB)}, 44")
    a(f"s_mul_i32 s33, {s(sW)}, 12")
    a(f"s_add_u32 s32, s32, s33")
    a(f"s_mul_i32 {s(sA)}, s32, 5120")
    a(f"s_add_u32 {s(sA)}, {s(sA)}, {WS_WCT}")
    a(f"s_mul_i32 s32, {s(sSB)}, 176")
    a(f"s_add_u32 s32, s32, s33")
    a(f"s_lshl_b32 s32, s32, 10")
    a(f"s_add_u32 {s(sBq)}, s32, {WS_ACT}")
    for q in range(1,4):
        a(f"s_add_u32 {s(sBq+q)}, {s(sBq+q-1)}, {44*1024}")
    a("s_waitcnt lgkmcnt(0)")
    stamp(a,2)
    srd(a, 12, 4, 2048*1280)
    srd(a, 16, 6, 2048*1280)
    srd(a, 20, 10, WS_END)
    def loads(u):
        b = STG + 36*(u%NST)
        for p in range(5):
            if p<4: a(f"buffer_load_dwordx4 {v(b+4*p,4)}, {v(VO0)}, s[20:23], {s(sA)} offen offset:{p*1024}")
            else:   a(f"buffer_load_dwordx4 {v(b+4*p,4)}, {v(VO1)}, s[20:23], {s(sA)} offen")
        for q in range(4):
            a(f"buffer_load_dwordx4 {v(b+20+4*q,4)}, {v(VO0)}, s[20:23], {s(sBq+q)} offen")
        a(f"s_add_u32 {s(sA)}, {s(sA)}, 5120")
        for q in range(4):
            a(f"s_add_u32 {s(sBq+q)}, {s(sBq+q)}, 1024")
    for u in range(NST): loads(u)
    a(f"s_lshl_b32 s32, {s(sSB)}, 6")
    a(f"s_lshl_b32 s33, {s(sW)}, 4")
    a(f"s_add_u32 s32, s32, s33")
    a(f"v_add_u32 v6, s32, {v(VC)}")
    a(f"v_mul_u32_u24 v6, 1280, v6")
    a(f"v_mul_u32_u24 v7, 40, {v(VG)}")
    a(f"v_add_u32 v6, v6, v7")
    a(f"s_mul_i32 s34, {s(sNB)}, 160")
    for i in range(80): a(f"v_mov_b32 {v(ACC+i)}, 0")
    a(f"s_cmp_eq_u32 {s(sW)}, 3")
    a(f"s_cselect_b32 s35, 1, 2")
    a.label("K3_LOOP")
    def steps(withloads):
        for j in range(4):
            a(f"s_waitcnt vmcnt({27 if withloads else 9*(3-j)})")
            b = STG + 36*j
            for p in range(5):
                for q in range(4):
                    acc = ACC + 4*(4*p+q)
                    a(f"v_mfma_f32_16x16x32_bf16 {v(acc,4)}, {v(b+4*p,4)}, {v(b+20+4*q,4)}, {v(acc,4)}")
            if withloads: loads(j)
    steps(True)
    a("s_sub_u32 s35, s35, 1")
    a("s_cmp_lg_u32 s35, 0")
    a("s_cbranch_scc1 K3_LOOP")
    for p in range(5):
        a(f"buffer_load_dwordx2 {v(XR+2*p,2)}, v6, s[12:15], s34 offen offset:{8*p}")
    def steps2():
        for j in range(4):
            a(f"s_waitcnt vmcnt({9*(3-j)+5})")
            b = STG + 36*j
            for p in range(5):
                for q in range(4):
                    acc = ACC + 4*(4*p+q)
                    a(f"v_mfma_f32_16x16x32_bf16 {v(acc,4)}, {v(b+4*p,4)}, {v(b+20+4*q,4)}, {v(acc,4)}")
    steps2()
    stamp(a,6)
    a.nop(8)
    a(f"s_mul_i32 s35, {s(sW)}, 5120")
    a(f"v_add_u32 v7, s35, {v(VO0)}")
    for q in range(4):
        lab = a.newlabel("K3_SK")
        a(f"s_cmp_eq_u32 {s(sW)}, {q}")
        a(f"s_cbranch_scc1 {lab}")
        for p in range(5):
            a(f"ds_write_b128 v7, {v(ACC+4*(4*p+q),4)} offset:{p*1024}")
        a.label(lab)
        a(f"v_add_u32 v7, 20480, v7")
    FIN = 20
    for q in range(4):
        lab = a.newlabel("K3_MV")
        a(f"s_cmp_lg_u32 {s(sW)}, {q}")
        a(f"s_cbranch_scc1 {lab}")
        for p in range(5):
            for r in range(4):
                a(f"v_mov_b32 {v(FIN+4*p+r)}, {v(ACC+4*(4*p+q)+r)}")
        a.label(lab)
    a("s_waitcnt lgkmcnt(0)")
    a("s_barrier")
    a(f"s_mul_i32 s35, {s(sW)}, 20480")
    a(f"v_add_u32 v7, s35, {v(VO0)}")
    RD = 40
    for src in range(4):
        lab = a.newlabel("K3_RD")
        a(f"s_cmp_eq_u32 {s(sW)}, {src}")
        a(f"s_cbranch_scc1 {lab}")
        for p in range(5):
            a(f"ds_read_b128 {v(RD+4*p,4)}, v7 offset:{src*5120+p*1024}")
        a("s_waitcnt lgkmcnt(0)")
        for i in range(20):
            a(f"v_add_f32 {v(FIN+i)}, {v(FIN+i)}, {v(RD+i)}")
        a.label(lab)
    a("s_waitcnt vmcnt(0)")
    stamp(a,7)
    a(f"s_mov_b32 s36, 0xffff0000")
    for p in range(5):
        a(f"v_lshlrev_b32 v60, 16, {v(XR+2*p)}")
        a(f"v_and_b32 v61, s36, {v(XR+2*p)}")
        a(f"v_lshlrev_b32 v62, 16, {v(XR+2*p+1)}")
        a(f"v_and_b32 v63, s36, {v(XR+2*p+1)}")
        for r in range(4):
            a(f"v_add_f32 {v(FIN+4*p+r)}, {v(FIN+4*p+r)}, v{60+r}")
        a(f"v_cvt_pk_bf16_f32 {v(64+2*p)}, {v(FIN+4*p)}, {v(FIN+4*p+1)}")
        a(f"v_cvt_pk_bf16_f32 {v(64+2*p+1)}, {v(FIN+4*p+2)}, {v(FIN+4*p+3)}")
        a(f"buffer_store_dwordx2 {v(64+2*p,2)}, v6, s[16:19], s34 offen offset:{8*p}")
    a("s_waitcnt vmcnt(0)")
    stamp(a,8); stamp_rt(a,9)
    a("s_waitcnt lgkmcnt(0)")
    stamp_flush(a, 10, 77, sW, 1)
    trace_end(a,2,sW)
    a.label("K3_END")
    a("s_endpgm")
    return ACC+80
```

```python
import sys
import common
if len(sys.argv)>2: common.STAMPS=True
from common import *
from k1 import gen_k1, K1_LDS, NWG1
from k2 import gen_k2, NSIDE, K2_LDS
from k3 import gen_k3
hdr = open('parallel_sum__linear_attn_block__mixer_gmlp__prompt.s.ref').read().split('\n')
head = [l for l in hdr if l.startswith(';') and '@launch' not in l]
out = "\n".join(head) + "\n"
out += f"; @launch kernel=k1_kernel grid=({NWG1},1,1) block=(512,1,1) lds={K1_LDS}\n"
out += f"; @launch kernel=k2_kernel grid=(256,1,1) block=(448,1,1) lds={K2_LDS}\n"
out += "; @launch kernel=k3_kernel grid=(256,1,1) block=(256,1,1) lds=81920\n"
out += '.amdgcn_target "amdgcn-amd-amdhsa--gfx950"\n.text\n'
a = Asm(); gen_k1(a); out += a.text() + kernel_desc("k1_kernel", 256)
a2 = Asm(); a2.lab = 1000; gen_k2(a2); out += a2.text() + kernel_desc("k2_kernel", 256)
a3 = Asm(); a3.lab = 2000; gen_k3(a3); out += a3.text() + kernel_desc("k3_kernel", 256)
dst = sys.argv[1] if len(sys.argv)>1 else 'parallel_sum__linear_attn_block__mixer_gmlp__prompt.s'
open(dst,'w').write(out)
print("wrote", dst, len(out))
```

```python
from common import *
import os
ABL = os.environ.get('ABL','').split(',')

LOG2E = 1.4426950408889634
GA = -2.0*0.7978845608028654*LOG2E
GB = GA*0.044715

def gelu4(a, xs, ts, sB, vA):
    for x,t in zip(xs,ts): a(f"v_mul_f32 {v(t)}, {v(x)}, {v(x)}")
    for x,t in zip(xs,ts): a(f"v_fma_f32 {v(t)}, {v(t)}, {s(sB)}, {v(vA)}")
    for x,t in zip(xs,ts): a(f"v_mul_f32 {v(t)}, {v(t)}, {v(x)}")
    for x,t in zip(xs,ts): a(f"v_exp_f32 {v(t)}, {v(t)}")
    for x,t in zip(xs,ts): a(f"v_add_f32 {v(t)}, 1.0, {v(t)}")
    for x,t in zip(xs,ts): a(f"v_rcp_f32 {v(t)}, {v(t)}")
    for x,t in zip(xs,ts): a(f"v_mul_f32 {v(x)}, {v(x)}, {v(t)}")

def phi4(a, xs, ts, sL, sEps):
    for x,t in zip(xs,ts): a(f"v_mul_f32 {v(t)}, {s(sL)}, {v(x)}")
    for x,t in zip(xs,ts): a(f"v_min_f32 {v(t)}, 0, {v(t)}")
    for x,t in zip(xs,ts): a(f"v_exp_f32 {v(t)}, {v(t)}")
    for x,t in zip(xs,ts): a(f"v_max_f32 {v(x)}, 0, {v(x)}")
    for x,t in zip(xs,ts): a(f"v_add_f32 {v(x)}, {s(sEps)}, {v(x)}")
    for x,t in zip(xs,ts): a(f"v_add_f32 {v(x)}, {v(x)}, {v(t)}")

def dpp_red16(a, regs):
    for rot in (8,4,2,1):
        for r in regs:
            a(f"v_add_f32_dpp {v(r)}, {v(r)}, {v(r)} row_ror:{rot} row_mask:0xf bank_mask:0xf")
        if len(regs) < 3:
            a.nop(2)

TQ, TK, TV, TZ1, TZ2 = 0,1,2,3,4
JOBS = [
 [(TK,0),(TK,1),(TV,0),(TV,1)], [(TK,2),(TK,3),(TV,2),(TV,3)], [(TK,4),(TK,5),(TV,4),(TV,5)],
 [(TK,6),(TK,7),(TV,6),(TV,7)], [(TK,8),(TK,9),(TV,8),(TV,9)], [(TK,10),(TQ,8),(TV,10),(TQ,9)],
 [(TQ,0),(TQ,1),(TQ,2),(TQ,3)],
 [(TQ,4),(TQ,5),(TQ,6),(TQ,7)],
 [(TZ1,0),(TZ1,1),(TZ1,2),(TZ1,3)], [(TZ1,4),(TZ1,5),(TZ1,6),(TZ1,7)], [(TZ1,8),(TZ1,9),(TZ1,10),(TZ1,11)],
 [(TZ2,0),(TZ2,1),(TZ2,2),(TZ2,3)], [(TZ2,4),(TZ2,5),(TZ2,6),(TZ2,7)], [(TZ2,8),(TZ2,9),(TZ2,10),(TZ2,11)],
]
STAGE = 49152
LDS_ST = 3*STAGE
LDS_CS = LDS_ST + 1024
LDS_ZS = LDS_CS + 1024
K1_LDS = LDS_ZS + 1024
KVPITCH = 144
NWG1 = 256

def gen_k1(a):
    a.raw(".globl k1_kernel"); a.raw(".p2align 8"); a.raw(".type k1_kernel,@function"); a.label("k1_kernel")
    a(f"s_cmp_ge_u32 s2, 256"); a("s_cbranch_scc1 K1_END")
    a(f"s_cmp_ge_u32 s2, 224"); a("s_cbranch_scc1 K1_PF" if 'nopf' not in ABL else "s_cbranch_scc1 K1_END")
    if 'exit0' in ABL: a("s_endpgm")
    stamp(a,0); stamp_rt(a,1); trace_begin(a)
    a(f"s_load_dwordx2 s[4:5], s[0:1], {KA_X}")
    a(f"s_load_dwordx2 s[6:7], s[0:1], {KA_WQKV}")
    a(f"s_load_dwordx2 s[8:9], s[0:1], {KA_WIN}")
    a(f"s_load_dwordx2 s[10:11], s[0:1], {KA_WS}")
    VLANE, VC, VG = 1, 2, 3
    VDX, VDW0, VDW1 = 8, 9, 10
    XB, WB = 11, 12
    XA, WA = 16, 18
    ONE = 24
    S1, S2 = 28, 29
    UT = 32
    XF = 40
    WF = 72
    CSA = 104
    ACC = 192
    sRB, sCG, sW, sTY, sIX, sRH, sCQ = 24,25,26,27,28,29,30
    sXS, sWS, sPITCH, sMX, sMW = 31,32,33,34,35
    a(f"s_and_b32 s36, s2, 3")
    a(f"s_lshl_b32 s36, s36, 2")
    a(f"s_bfe_u32 s37, s2, 0x20003")
    a(f"s_add_u32 {s(sRB)}, s36, s37")
    a(f"s_bfe_u32 s36, s2, 0x10002")
    a(f"s_mul_i32 s36, s36, 7")
    a(f"s_lshr_b32 s37, s2, 5")
    a(f"s_add_u32 {s(sCG)}, s36, s37")
    a(f"v_lshrrev_b32 v4, 6, v0")
    a(f"v_and_b32 {v(VLANE)}, 63, v0")
    a(f"v_and_b32 {v(VC)}, 15, v0")
    a(f"v_readfirstlane_b32 {s(sW)}, v4")
    a(f"v_lshrrev_b32 {v(VG)}, 4, {v(VLANE)}")
    for cg in range(14):
        val = 0
        for w,(ty,ix) in enumerate(JOBS[cg]):
            val |= ((ty<<5)|ix) << (8*w)
        lab = a.newlabel("K1_J")
        a(f"s_cmp_lg_u32 {s(sCG)}, {cg}")
        a(f"s_cbranch_scc1 {lab}")
        a(f"s_mov_b32 s38, {val}")
        a.label(lab)
    a(f"s_lshr_b32 {s(sRH)}, {s(sW)}, 2")
    a(f"s_and_b32 {s(sCQ)}, {s(sW)}, 3")
    a(f"s_lshl_b32 s36, {s(sCQ)}, 3")
    a(f"s_lshr_b32 s36, s38, s36")
    a(f"s_and_b32 {s(sIX)}, s36, 31")
    a(f"s_bfe_u32 {s(sTY)}, s36, 0x30005")
    a(f"s_lshr_b32 s39, {s(sW)}, 1")
    a(f"s_lshl_b32 s36, s39, 3")
    a(f"s_lshr_b32 s36, s38, s36")
    a(f"s_and_b32 s40, s36, 31")
    a(f"s_bfe_u32 s41, s36, 0x30005")
    a(f"s_lshl_b32 s36, s40, 7")
    a(f"s_mul_i32 s37, s40, 120")
    a(f"s_mov_b32 {s(sWS)}, s36")
    a(f"s_add_u32 s42, s37, 1280")
    a(f"s_cmp_eq_u32 s41, {TK}"); a(f"s_cselect_b32 {s(sWS)}, s42, {s(sWS)}")
    a(f"s_add_u32 s42, s37, 2560")
    a(f"s_cmp_eq_u32 s41, {TV}"); a(f"s_cselect_b32 {s(sWS)}, s42, {s(sWS)}")
    a(f"s_add_u32 s42, s36, 1536")
    a(f"s_cmp_eq_u32 s41, {TZ2}"); a(f"s_cselect_b32 {s(sWS)}, s42, {s(sWS)}")
    a(f"s_cmp_lt_u32 s41, {TZ1}")
    a(f"s_movk_i32 {s(sPITCH)}, 3072")
    a(f"s_cselect_b32 {s(sPITCH)}, 3840, {s(sPITCH)}")
    a(f"v_lshrrev_b32 v4, 3, {v(VLANE)}")
    a(f"v_and_b32 v5, 7, {v(VLANE)}")
    a(f"v_bfe_u32 v6, v4, 1, 1")
    a(f"v_xor_b32 v6, v5, v6")
    a(f"v_mul_lo_u32 v7, v4, {s(sPITCH)}")
    a(f"v_lshl_add_u32 {v(VDW0)}, v6, 4, v7")
    a(f"s_and_b32 s36, {s(sW)}, 1")
    a(f"s_lshl_b32 s36, s36, 5")
    a(f"s_mul_i32 s36, s36, {s(sPITCH)}")
    a(f"s_add_u32 {s(sWS)}, {s(sWS)}, s36")
    a(f"s_lshl_b32 s36, {s(sCQ)}, 1")
    a(f"v_bfe_u32 v6, v4, 1, 1")
    a(f"v_or_b32 v6, s36, v6")
    a(f"v_xor_b32 v6, v5, v6")
    a(f"v_mul_u32_u24 v7, 1280, v4")
    a(f"v_lshl_add_u32 {v(VDX)}, v6, 4, v7")
    a(f"s_lshl_b32 s36, {s(sRB)}, 7")
    a(f"s_lshl_b32 s37, {s(sW)}, 4")
    a(f"s_add_u32 s36, s36, s37")
    a(f"s_mul_i32 {s(sXS)}, s36, 1280")
    a(f"s_lshl_b32 {s(sMX)}, {s(sW)}, 11")
    a(f"s_lshl_b32 {s(sMW)}, {s(sW)}, 12")
    a(f"s_add_u32 {s(sMW)}, {s(sMW)}, 16384")
    a("s_waitcnt lgkmcnt(0)")
    srd(a, 12, 4, 2048*1280)
    srd(a, 20, 10, WS_END)
    a(f"s_and_b32 s7, s7, 0xffff")
    a(f"s_and_b32 s9, s9, 0xffff")
    a(f"s_cmp_lt_u32 s41, {TZ1}")
    a(f"s_cselect_b32 s16, s6, s8")
    a(f"s_cselect_b32 s17, s7, s9")
    a(f"s_mov_b32 s18, {640*3072}")
    a(f"s_cselect_b32 s18, {640*3840}, s18")
    a(f"s_mov_b32 s19, 0x00020000")
    a(f"s_lshl_b32 s43, {s(sPITCH)}, 3")
    a(f"s_lshl_b32 s44, {s(sPITCH)}, 6")
    def dma(st):
        slot = (st%3)*STAGE
        for n in range(2):
            a(f"s_add_u32 m0, {s(sMX)}, {slot+1024*n}")
            a(f"s_add_u32 s45, {s(sXS)}, {10240*n+128*st}")
            a(f"buffer_load_dwordx4 {v(VDX)}, s[12:15], s45 offen lds")
        a(f"s_mov_b32 s45, {s(sWS)}")
        for n in range(4):
            a(f"s_add_u32 m0, {s(sMW)}, {slot+1024*n}")
            if n: a(f"s_add_u32 s45, s45, s43")
            else: a("s_nop 0")
            a(f"buffer_load_dwordx4 {v(VDW0)}, s[16:19], s45 offen lds")
        a(f"s_add_u32 {s(sWS)}, {s(sWS)}, s44")
    dma(0); dma(1)
    a(f"v_lshlrev_b32 v4, 2, v0")
    a(f"v_add_u32 v4, {LDS_ZS}, v4")
    a(f"v_mov_b32 v5, 0")
    a(f"v_cmp_gt_u32 vcc, 256, v0")
    a("s_and_saveexec_b64 s[46:47], vcc")
    a("ds_write_b32 v4, v5")
    a("s_mov_b64 exec, s[46:47]")
    a(f"v_lshrrev_b32 v4, 2, {v(VC)}")
    a(f"v_lshlrev_b32 v4, 4, v4")
    a(f"v_and_b32 v5, 3, {v(VC)}")
    a(f"v_add_u32 v4, v4, v5")
    a(f"s_lshl_b32 s36, {s(sRH)}, 6")
    a(f"v_add_u32 v4, s36, v4")
    a(f"v_lshlrev_b32 v4, 7, v4")
    a(f"v_lshrrev_b32 v5, 1, {v(VC)}")
    a(f"v_xor_b32 v5, v5, {v(VG)}")
    a(f"v_lshl_add_u32 {v(XB)}, v5, 4, v4")
    a(f"v_bfe_u32 v4, {v(VLANE)}, 2, 2")
    a(f"v_and_b32 v5, 3, {v(VLANE)}")
    a(f"v_lshl_add_u32 v6, {v(VG)}, 3, v4")
    a(f"v_lshlrev_b32 v6, 7, v6")
    a(f"s_lshl_b32 s36, {s(sCQ)}, 13")
    a(f"s_add_u32 s36, s36, 16384")
    a(f"v_add_u32 v6, s36, v6")
    a(f"v_lshrrev_b32 v4, 1, v4")
    if 'nat' in ABL:
        a(f"v_and_b32 v7, 1, {v(VG)}")
        a(f"v_lshl_or_b32 v4, v7, 1, v4")
        for f in range(4):
            a(f"v_xor_b32 v7, {f}, v4")
            a(f"v_lshl_add_u32 {v(WB+f)}, v7, 5, v6")
            a(f"v_lshl_add_u32 {v(WB+f)}, v5, 3, {v(WB+f)}")
    else:
        a(f"v_xor_b32 v4, {s(sRH)}, v4")
        for f in range(4):
            a(f"v_lshlrev_b32 v7, 1, v5")
            if f>>1: a(f"v_or_b32 v7, 1, v7")
            a(f"v_xor_b32 v7, v7, v4")
            a(f"v_lshl_add_u32 {v(WB+f)}, v7, 4, v6")
            if f&1: a(f"v_add_u32 {v(WB+f)}, 8, {v(WB+f)}")
    for i in range(4): a(f"v_mov_b32 {v(ONE+i)}, 0x3f803f80")
    for i in range(4): a(f"v_mov_b32 {v(S1+i)}, 0")
    a(f"s_mov_b32 s48, 0xffff0000")
    for i in range(64): a(f"v_mov_b32 {v(ACC+i)}, 0")
    for i in range(8): a(f"v_mov_b32 {v(CSA+i)}, 0")
    for i in range(16): a(f"v_mov_b32 {v(XF+16+i)}, 0")
    for i in range(16): a(f"v_mov_b32 {v(WF+16+i)}, 0")
    for i in range(4): a(f"v_mov_b32 {v(116+i)}, 0")
    a(f"s_mov_b32 s49, 0"); a(f"s_mov_b32 s50, 0"); a(f"s_mov_b32 s51, {2*STAGE}")
    a(f"s_lshl_b32 s52, {s(sCQ)}, 9")
    a(f"s_add_u32 {s(sXS)}, {s(sXS)}, 256")
    if 'exit2' in ABL:
        a("s_waitcnt vmcnt(0)"); a("s_barrier"); a("s_endpgm")
    stamp(a,2)
    if 'prioA' in ABL or 'prioB' in ABL:
        lp = a.newlabel("K1_PR")
        a(f"s_cmp_eq_u32 {s(sRH)}, {0 if 'prioA' in ABL else 1}")
        a(f"s_cbranch_scc0 {lp}")
        a("s_setprio 1")
        a.label(lp)
    a(f"s_cmp_eq_u32 {s(sTY)}, {TQ}"); a("s_cbranch_scc1 K1_MAIN_N")
    a(f"s_cmp_eq_u32 {s(sTY)}, {TZ1}"); a("s_cbranch_scc1 K1_MAIN_N")
    a("s_branch K1_MAIN_T")
    XS = 112
    XQ = 22
    sST, sSLOT, sDSL = 49, 50, 51
    def read_list(sig, buf):
        L=[]
        for q in range(4):
            L.append(f"ds_read_b128 {v(XF+16*buf+4*q,4)}, {v(XA+sig)} offset:{q*512}")
        for f in range(4):
            for hh in range(2):
                L.append(f"ds_read_b64_tr_b16 {v(WF+16*buf+4*f+2*hh,2)}, {v(WA+f)} offset:{sig*4096+hh*512}")
        L.append(f"ds_read_b128 {v(XS+4*buf,4)}, {v(XQ+sig)}")
        return L
    def dma_groups():
        g=[]
        for n in range(2):
            g.append([f"s_add_u32 s46, {s(sMX)}, {s(sDSL)}", f"s_add_u32 m0, s46, {1024*n}", f"s_add_u32 s45, {s(sXS)}, {10240*n}",
                      f"buffer_load_dwordx4 {v(VDX)}, s[12:15], s45 offen lds"])
        for n in range(4):
            pre = [f"s_add_u32 s46, {s(sMW)}, {s(sDSL)}", f"s_add_u32 m0, s46, {1024*n}"]
            pre += [f"s_mov_b32 s47, {s(sWS)}"] if n==0 else [f"s_add_u32 s47, s47, s43"]
            g.append(pre + [f"buffer_load_dwordx4 {v(VDW0)}, s[16:19], s47 offen lds"])
        g[-1] += [f"s_add_u32 {s(sWS)}, {s(sWS)}, s44", f"s_add_u32 {s(sXS)}, {s(sXS)}, 128"]
        return g
    def compute(orient, buf, groups=None, rds=None):
        xb = XF+16*buf; wb = WF+16*buf; xs = XS+4*buf
        ops = []
        for d in range(4):
            ops += [f"v_lshlrev_b32 {v(UT+2*d)}, 16, {v(xs+d)}", f"v_and_b32 {v(UT+2*d+1)}, s48, {v(xs+d)}"]
        for e in range(8):
            ops += [f"v_add_f32 {v(S1+(e&1))}, {v(S1+(e&1))}, {v(UT+e)}", f"v_fmac_f32 {v(S1+2+(e&1))}, {v(UT+e)}, {v(UT+e)}"]
        mf = []
        for f in range(4):
            for q in range(4):
                acc = ACC + 4*(4*f+q)
                if orient == 'N': mf.append(f"v_mfma_f32_16x16x32_bf16 {v(acc,4)}, {v(wb+4*f,4)}, {v(xb+4*q,4)}, {v(acc,4)}")
                else: mf.append(f"v_mfma_f32_16x16x32_bf16 {v(acc,4)}, {v(xb+4*q,4)}, {v(wb+4*f,4)}, {v(acc,4)}")
        for ff in range(2):
            if orient == 'N': mf.append(f"v_mfma_f32_16x16x32_bf16 {v(CSA+4*ff,4)}, {v(wb+4*ff,4)}, {v(ONE,4)}, {v(CSA+4*ff,4)}")
            else: mf.append(f"v_mfma_f32_16x16x32_bf16 {v(CSA+4*ff,4)}, {v(ONE,4)}, {v(wb+4*ff,4)}, {v(CSA+4*ff,4)}")
        k = 0
        for idx,m in enumerate(mf):
            a(m)
            if rds and idx < len(rds) and 'nord' not in ABL: a(rds[idx])
            if 'nostat' not in ABL:
                for o in ops[k:k+2]: a(o)
            k += 2
            if groups and idx>=12 and idx-12 < len(groups):
                for o in groups[idx-12]: a(o)
    def mainloop(orient):
        L = a.newlabel("K1_LOOP"); L2 = a.newlabel("K1_ND"); L3 = a.newlabel("K1_NW"); L4 = a.newlabel("K1_J2")
        a.label(L)
        a(f"s_cmp_lt_u32 {s(sST)}, {9 if 'nodma' not in ABL else 0}")
        a(f"s_cbranch_scc1 {L3}")
        a("s_waitcnt vmcnt(0)")
        a.label(L3)
        a("s_waitcnt vmcnt(6) lgkmcnt(0)")
        if 'nobar' not in ABL: a("s_barrier")
        a(f"v_add_u32 {v(XA)}, {s(sSLOT)}, {v(XB)}")
        a(f"v_xor_b32 {v(XA+1)}, 64, {v(XA)}")
        a(f"v_add_u32 {v(XQ)}, s52, {v(XA)}")
        a(f"v_xor_b32 {v(XQ+1)}, 64, {v(XQ)}")
        for f in range(4): a(f"v_add_u32 {v(WA+f)}, {s(sSLOT)}, {v(WB+f)}")
        a(f"s_cmp_lt_u32 {s(sST)}, {8 if 'nodma' not in ABL else 0}")
        a(f"s_cbranch_scc0 {L2}")
        compute(orient, 1, dma_groups(), read_list(0,0))
        a(f"s_branch {L4}")
        a.label(L2)
        compute(orient, 1, None, read_list(0,0))
        a.label(L4)
        a("s_waitcnt lgkmcnt(0)")
        compute(orient, 0, None, read_list(1,1))
        a(f"s_mov_b32 {s(sDSL)}, {s(sSLOT)}")
        a(f"s_add_u32 {s(sSLOT)}, {s(sSLOT)}, {STAGE}")
        a(f"s_cmp_eq_u32 {s(sSLOT)}, {3*STAGE}")
        a(f"s_cselect_b32 {s(sSLOT)}, 0, {s(sSLOT)}")
        a(f"s_add_u32 {s(sST)}, {s(sST)}, 1")
        a(f"s_cmp_lt_u32 {s(sST)}, 10")
        a(f"s_cbranch_scc1 {L}")
        a("s_waitcnt lgkmcnt(0)")
        compute(orient, 1)
        a.nop(8)
        stamp(a,7)
        a(f"v_add_f32 {v(S1)}, {v(S1)}, {v(S1+1)}")
        a(f"v_add_f32 {v(S1+1)}, {v(S1+2)}, {v(S1+3)}")
        a(f"v_xor_b32 v4, 16, {v(VLANE)}")
        a(f"v_lshlrev_b32 v4, 2, v4")
        a(f"v_xor_b32 v5, 32, {v(VLANE)}")
        a(f"v_lshlrev_b32 v5, 2, v5")
        for k in range(2): a(f"ds_bpermute_b32 v{6+k}, v4, {v(S1+k)}")
        a("s_waitcnt lgkmcnt(0)")
        for k in range(2): a(f"v_add_f32 {v(S1+k)}, {v(S1+k)}, v{6+k}")
        for k in range(2): a(f"ds_bpermute_b32 v{6+k}, v5, {v(S1+k)}")
        a("s_waitcnt lgkmcnt(0)")
        for k in range(2): a(f"v_add_f32 {v(S1+k)}, {v(S1+k)}, v{6+k}")
        a(f"s_mov_b32 s36, {f32bits(1.0/640)}")
        a(f"s_mov_b32 s37, {f32bits(1e-5)}")
        a(f"v_mul_f32 {v(S1)}, s36, {v(S1)}")
        a(f"v_mul_f32 {v(S1+1)}, s36, {v(S1+1)}")
        a(f"v_fma_f32 {v(S1+1)}, -{v(S1)}, {v(S1)}, {v(S1+1)}")
        a(f"v_max_f32 {v(S1+1)}, 0, {v(S1+1)}")
        a(f"v_add_f32 {v(S1+1)}, s37, {v(S1+1)}")
        a(f"v_rsq_f32 {v(S1+2)}, {v(S1+1)}")
        a.nop(1)
        a(f"v_mul_f32 {v(S1+3)}, {v(S1)}, {v(S1+2)}")
        a(f"v_lshrrev_b32 v4, 7, {v(XB)}")
        a(f"s_lshl_b32 s36, {s(sCQ)}, 2")
        a(f"v_add_u32 v4, s36, v4")
        a(f"v_lshlrev_b32 v4, 3, v4")
        a(f"v_add_u32 v4, {LDS_ST}, v4")
        a(f"ds_write_b64 v4, {v(S1+2,2)}")
        a(f"s_lshl_b32 s36, {s(sCQ)}, 8")
        a(f"s_lshl_b32 s37, {s(sRH)}, 5")
        a(f"s_add_u32 s36, s36, s37")
        a(f"s_add_u32 s36, s36, {LDS_CS}")
        if orient == 'N':
            a(f"v_lshlrev_b32 v4, 6, {v(VG)}")
            a(f"v_add_u32 v4, s36, v4")
            a(f"ds_write_b128 v4, {v(CSA,4)}")
            a(f"ds_write_b128 v4, {v(CSA+4,4)} offset:16")
        else:
            a(f"v_lshrrev_b32 v4, 2, {v(VC)}")
            a(f"v_lshlrev_b32 v4, 6, v4")
            a(f"v_and_b32 v5, 3, {v(VC)}")
            a(f"v_lshl_add_u32 v4, v5, 2, v4")
            a(f"v_add_u32 v4, s36, v4")
            a(f"ds_write_b32 v4, {v(CSA)}")
            a(f"ds_write_b32 v4, {v(CSA+4)} offset:16")
        a("s_waitcnt lgkmcnt(0)")
        a("s_barrier")
        if 'noepi' in ABL: a("s_endpgm")
    sL, sEPS, sGB = 40, 41, 42
    VGA = 4
    def consts():
        a(f"s_mov_b32 {s(sL)}, {f32bits(LOG2E)}")
        a(f"s_mov_b32 {s(sEPS)}, {f32bits(1e-6)}")
        a(f"s_mov_b32 {s(sGB)}, {f32bits(GB)}")
        a(f"v_mov_b32 {v(VGA)}, {f32bits(GA)}")
    TMP = 160; PK = 36; SR = 112; CSR = 144
    a.label("K1_MAIN_N")
    mainloop('N')
    consts()
    a(f"v_lshrrev_b32 v5, 7, {v(XB)}")
    a(f"v_lshlrev_b32 v6, 3, v5")
    a(f"v_add_u32 v6, {LDS_ST}, v6")
    for q in range(4):
        a(f"ds_read_b64 {v(SR+2*q,2)}, v6 offset:{32*q}")
    a(f"s_lshl_b32 s36, {s(sCQ)}, 8")
    a(f"s_add_u32 s36, s36, {LDS_CS}")
    a(f"v_lshlrev_b32 v6, 6, {v(VG)}")
    a(f"v_add_u32 v6, s36, v6")
    a(f"s_lshl_b32 s37, {s(sRH)}, 5")
    a(f"v_add_u32 v7, s37, v6")
    a(f"v_xor_b32 v8, 32, v7")
    for f in range(4):
        a(f"ds_read_b128 {v(CSR+4*f,4)}, {'v7' if f<2 else 'v8'} offset:{16*(f&1)}")
    a(f"s_cmp_eq_u32 {s(sTY)}, {TQ}")
    a(f"s_movk_i32 s43, 1536")
    a(f"s_cselect_b32 s43, 1280, s43")
    a(f"s_cselect_b32 s44, {WS_PQ}, {WS_Z1}")
    a(f"s_lshl_b32 s45, {s(sIX)}, 7")
    a(f"s_add_u32 s44, s44, s45")
    a(f"s_lshl_b32 s45, {s(sRB)}, 7")
    a(f"v_add_u32 v5, s45, v5")
    a(f"v_mul_lo_u32 v5, v5, s43")
    a(f"v_lshl_add_u32 v5, {v(VG)}, 5, v5")
    a(f"s_lshl_b32 s37, {s(sRH)}, 4")
    a(f"v_add_u32 v5, s37, v5")
    a(f"v_xor_b32 v9, 16, v5")
    a(f"s_lshl_b32 s43, s43, 2")
    a("s_waitcnt lgkmcnt(0)")
    a(f"s_cmp_eq_u32 {s(sTY)}, {TQ}")
    a("s_cbranch_scc0 K1_EPI_Z1")
    def epiN(kind):
        for q in range(4):
            pk = PK + 8*(q%2)
            for f in range(4):
                xs = [ACC+4*(4*f+q)+r for r in range(4)]
                ts = [TMP+4*f+r for r in range(4)]
                for r in range(4): a(f"v_mul_f32 {v(ts[r])}, {v(SR+2*q+1)}, {v(CSR+4*f+r)}")
                for r in range(4): a(f"v_fma_f32 {v(xs[r])}, {v(xs[r])}, {v(SR+2*q)}, -{v(ts[r])}")
                if kind=='q': phi4(a, xs, ts, sL, sEPS)
                else: gelu4(a, xs, ts, sGB, VGA)
                a(f"v_cvt_pk_bf16_f32 {v(pk+2*f)}, {v(xs[0])}, {v(xs[1])}")
                a(f"v_cvt_pk_bf16_f32 {v(pk+2*f+1)}, {v(xs[2])}, {v(xs[3])}")
            a(f"buffer_store_dwordx4 {v(pk,4)}, v5, s[20:23], s44 offen")
            a(f"buffer_store_dwordx4 {v(pk+4,4)}, v9, s[20:23], s44 offen")
            if q<3: a(f"s_add_u32 s44, s44, s43")
    epiN('q')
    a("s_waitcnt vmcnt(0)") if STAMPS else None
    stamp(a,8); stamp_rt(a,9)
    a("s_waitcnt lgkmcnt(0)") if STAMPS else None
    stamp_flush(a, 10, 6*32, sW, 0)
    trace_end(a,0,sW)
    a("s_endpgm")
    a.label("K1_EPI_Z1")
    epiN('z1')
    trace_end(a,0,sW)
    a("s_endpgm")
    a.label("K1_MAIN_T")
    mainloop('T')
    consts()
    a(f"s_lshl_b32 s36, {s(sRH)}, 9")
    a(f"s_add_u32 s36, s36, {LDS_ST}")
    a(f"v_lshlrev_b32 v6, 7, {v(VG)}")
    a(f"v_add_u32 v6, s36, v6")
    for k in range(8):
        a(f"ds_read_b128 {v(SR+4*k,4)}, v6 offset:{16*k}")
    a(f"v_lshrrev_b32 v7, 2, {v(VC)}")
    a(f"v_lshlrev_b32 v7, 4, v7")
    a(f"v_and_or_b32 v7, {v(VC)}, 3, v7")
    a(f"s_lshl_b32 s36, {s(sCQ)}, 8")
    a(f"s_add_u32 s36, s36, {LDS_CS}")
    a(f"v_lshlrev_b32 v6, 2, v7")
    a(f"v_add_u32 v6, s36, v6")
    a(f"s_lshl_b32 s37, {s(sRH)}, 5")
    a(f"v_add_u32 v8, s37, v6")
    a(f"v_xor_b32 v9, 32, v8")
    for f in range(4):
        a(f"ds_read_b32 {v(CSR+f)}, {'v8' if f<2 else 'v9'} offset:{16*(f&1)}")
    a("s_waitcnt lgkmcnt(0)")
    def normT(f, q):
        xs = [ACC+4*(4*f+q)+r for r in range(4)]
        ts = [TMP+4*q+r for r in range(4)]
        for r in range(4): a(f"v_mul_f32 {v(ts[r])}, {v(SR+2*(4*q+r)+1)}, {v(CSR+f)}")
        for r in range(4): a(f"v_fma_f32 {v(xs[r])}, {v(xs[r])}, {v(SR+2*(4*q+r))}, -{v(ts[r])}")
        return xs, ts
    def packT(f, pk):
        for q in range(4):
            for h in range(2):
                a(f"v_cvt_pk_bf16_f32 {v(pk+2*q+h)}, {v(ACC+4*(4*f+q)+2*h)}, {v(ACC+4*(4*f+q)+2*h+1)}")
    a(f"s_cmp_eq_u32 {s(sTY)}, {TZ2}")
    a("s_cbranch_scc1 K1_EPI_Z2")
    a(f"s_mul_i32 s43, {s(sW)}, {64*KVPITCH}")
    a(f"v_mul_u32_u24 v5, {KVPITCH}, v7")
    a(f"v_lshl_add_u32 v5, {v(VG)}, 5, v5")
    a(f"v_add_u32 v5, s43, v5")
    a(f"s_mul_i32 s37, {s(sRH)}, {8*KVPITCH}")
    a(f"v_add_u32 v8, s37, v5")
    a(f"s_sub_u32 s37, {8*KVPITCH}, s37")
    a(f"v_add_u32 v9, s37, v5")
    a(f"s_cmp_eq_u32 {s(sTY)}, {TK}")
    a("s_cbranch_scc0 K1_EPI_V")
    def epiKV(kind):
        for f in range(4):
            for q in range(4):
                xs, ts = normT(f,q)
                if kind=='k': phi4(a, xs, ts, sL, sEPS)
            pk = PK + 8*(f%2)
            packT(f, pk)
            a(f"ds_write_b128 {'v8' if f<2 else 'v9'}, {v(pk,4)} offset:{4*(f&1)*KVPITCH}")
            a(f"ds_write_b128 {'v8' if f<2 else 'v9'}, {v(pk+4,4)} offset:{4*(f&1)*KVPITCH+16}")
    epiKV('k')
    a("s_branch K1_KVJOIN")
    a.label("K1_EPI_V")
    epiKV('v')
    a.label("K1_KVJOIN")
    a("s_waitcnt lgkmcnt(0)")
    a("s_barrier")
    a(f"s_cmp_ge_u32 {s(sW)}, 6")
    a("s_cbranch_scc1 K1_KVDONE")
    a(f"s_lshr_b32 s57, {s(sW)}, 1")
    a(f"s_mul_i32 s44, {s(sIX)}, 3")
    a(f"s_add_u32 s44, s44, s57")
    a(f"s_cmp_ge_u32 s44, 32")
    a("s_cbranch_scc1 K1_KVDONE")
    a(f"s_and_b32 s43, {s(sW)}, 1")
    a(f"s_mul_i32 s43, s43, {64*KVPITCH}")
    a(f"s_mul_i32 s45, s57, {20*KVPITCH}")
    a(f"s_add_u32 s43, s43, s45")
    a(f"v_mul_u32_u24 v5, {KVPITCH}, {v(VC)}")
    a(f"v_lshl_add_u32 v5, {v(VG)}, 4, v5")
    a(f"v_add_u32 v5, s43, v5")
    B = 40
    for u in range(4):
        for k in range(4):
            off = 16*(k&1)*KVPITCH + (2*64*KVPITCH if k>=2 else 0) + 64*(u&1) + (4*64*KVPITCH if u>=2 else 0)
            a(f"ds_read_b128 {v(B+16*u+4*k,4)}, v5 offset:{off}")
    a(f"v_mul_u32_u24 v6, 80, {v(VC)}")
    a(f"v_lshl_add_u32 v6, {v(VG)}, 4, v6")
    a(f"v_cmp_gt_u32 s[46:47], 4, {v(VC)}")
    a(f"v_cmp_eq_u32 s[48:49], 0, {v(VG)}")
    a(f"v_cmp_eq_u32 s[50:51], 0, {v(VC)}")
    a(f"s_and_b64 s[52:53], s[46:47], s[48:49]")
    a(f"s_and_b64 s[54:55], s[50:51], s[48:49]")
    a(f"s_lshl_b32 s45, {s(sRB)}, 5")
    a(f"s_add_u32 s45, s45, s44")
    a(f"s_mul_i32 s45, s45, 1680")
    a(f"s_add_u32 s45, s45, {WS_KVP}")
    D = 112
    for u in range(4):
        a(f"s_waitcnt lgkmcnt({4*(3-u)})")
        b = B+16*u
        pairs = [(b, b+8),(b, b+12),(b+4, b+8),(b+4, b+12),(b, ONE),(b+4, ONE)]
        for ti,(A,Bq) in enumerate(pairs):
            c = "0" if u==0 else v(D+4*ti,4)
            a(f"v_mfma_f32_16x16x32_bf16 {v(D+4*ti,4)}, {v(A,4)}, {v(Bq,4)}, {c}")
    a.nop(8)
    specs = [(None, 0), ("s[46:47]", 16*20), ("s[48:49]", 16), ("s[52:53]", 16*20+16), ("s[50:51]", 400), ("s[54:55]", 416)]
    for ti,(m,item0) in enumerate(specs):
        if m: a(f"s_mov_b64 exec, {m}")
        a(f"buffer_store_dwordx4 {v(D+4*ti,4)}, v6, s[20:23], s45 offen offset:{item0*4}")
    a("s_mov_b64 exec, -1")
    a.label("K1_KVDONE")
    trace_end(a,0,sW)
    a("s_endpgm")
    a.label("K1_EPI_Z2")
    for f in range(4):
        for q in range(4):
            xs, ts = normT(f,q)
            gelu4(a, xs, ts, sGB, VGA)
    a(f"s_lshl_b32 s44, {s(sRB)}, 2")
    a(f"s_lshl_b32 s45, {s(sRH)}, 1")
    a(f"s_add_u32 s44, s44, s45")
    a(f"v_lshrrev_b32 v9, 1, {v(VG)}")
    a(f"v_add_u32 v9, s44, v9")
    a(f"v_and_b32 v10, 1, {v(VG)}")
    a(f"v_lshlrev_b32 v10, 9, v10")
    a(f"v_and_b32 v11, 3, {v(VC)}")
    a(f"v_lshl_add_u32 v10, v11, 4, v10")
    a(f"s_lshl_b32 s44, {s(sIX)}, 4")
    a(f"v_lshrrev_b32 v11, 2, {v(VC)}")
    a(f"v_lshlrev_b32 v11, 2, v11")
    a(f"v_add_u32 v11, s44, v11")
    a(f"s_mov_b32 s45, {WS_Z2F}")
    for f in range(4):
        a(f"s_lshl_b32 s37, {s(sRH)}, 1")
        a(f"s_xor_b32 s37, s37, {f}")
        a(f"v_add_u32 v5, s37, v11")
        a(f"v_mul_u32_u24 v6, 2731, v5")
        a(f"v_lshrrev_b32 v6, 16, v6")
        a(f"v_mul_u32_u24 v7, 24, v6")
        a(f"v_sub_u32 v5, v5, v7")
        a(f"v_mul_u32_u24 v7, 43, v5")
        a(f"v_lshrrev_b32 v7, 8, v7")
        a(f"v_mul_u32_u24 v8, 6, v7")
        a(f"v_sub_u32 v5, v5, v8")
        a(f"v_lshl_add_u32 v6, v6, 6, v9")
        a(f"v_mul_u32_u24 v6, 6, v6")
        a(f"v_add_u32 v6, v6, v5")
        a(f"v_lshl_add_u32 v6, v6, 10, v10")
        a(f"v_lshl_add_u32 v6, v7, 6, v6")
        pk = PK + 8*(f%2)
        packT(f, pk)
        a(f"buffer_store_dwordx4 {v(pk,4)}, v6, s[20:23], s45 offen")
        a(f"buffer_store_dwordx4 {v(pk+4,4)}, v6, s[20:23], s45 offen offset:256")
    ST0 = 112
    for q in range(4):
        for r in range(4):
            i = 4*q+r
            A = [ACC+4*(4*f+q)+r for f in range(4)]
            a(f"v_add_f32 {v(ST0+2*i)}, {v(A[0])}, {v(A[1])}")
            a(f"v_mul_f32 {v(ST0+2*i+1)}, {v(A[0])}, {v(A[0])}")
            a(f"v_add_f32 {v(ST0+2*i)}, {v(ST0+2*i)}, {v(A[2])}")
            a(f"v_fmac_f32 {v(ST0+2*i+1)}, {v(A[1])}, {v(A[1])}")
            a(f"v_add_f32 {v(ST0+2*i)}, {v(ST0+2*i)}, {v(A[3])}")
            a(f"v_fmac_f32 {v(ST0+2*i+1)}, {v(A[2])}, {v(A[2])}")
            a(f"v_fmac_f32 {v(ST0+2*i+1)}, {v(A[3])}, {v(A[3])}")
    dpp_red16(a, list(range(ST0, ST0+32)))
    a(f"s_lshl_b32 s36, {s(sRH)}, 9")
    a(f"s_add_u32 s36, s36, {LDS_ZS}")
    a(f"v_lshlrev_b32 v5, 7, {v(VG)}")
    a(f"v_add_u32 v5, s36, v5")
    a(f"v_cmp_eq_u32 vcc, 0, {v(VC)}")
    a("s_and_saveexec_b64 s[46:47], vcc")
    for k in range(32):
        a(f"ds_add_f32 v5, {v(ST0+k)} offset:{4*k}")
    a("s_mov_b64 exec, s[46:47]")
    a("s_waitcnt lgkmcnt(0)")
    a("s_barrier")
    a(f"s_cmp_lg_u32 {s(sW)}, 0")
    a("s_cbranch_scc1 K1_Z2DONE")
    a(f"v_lshlrev_b32 v5, 4, {v(VLANE)}")
    a(f"v_add_u32 v6, {LDS_ZS}, v5")
    a(f"ds_read_b128 v[8:11], v6")
    a(f"s_lshr_b32 s43, {s(sIX)}, 2")
    a(f"s_lshl_b32 s43, s43, 14")
    a(f"s_add_u32 s43, s43, {WS_ST}")
    a(f"s_lshl_b32 s44, {s(sRB)}, 10")
    a(f"s_add_u32 s43, s43, s44")
    a("s_waitcnt lgkmcnt(0)")
    a(f"buffer_store_dwordx4 v[8:11], v5, s[20:23], s43 offen")
    a.label("K1_Z2DONE")
    trace_end(a,0,sW)
    a("s_endpgm")
    a.label("K1_PF")
    a(f"s_load_dwordx2 s[4:5], s[0:1], {KA_WSP}")
    a(f"s_load_dwordx2 s[6:7], s[0:1], {KA_WO}")
    a(f"s_load_dwordx2 s[8:9], s[0:1], {KA_WOUT}")
    a(f"s_load_dwordx2 s[28:29], s[0:1], {KA_X}")
    a(f"s_load_dwordx2 s[30:31], s[0:1], {KA_WQKV}")
    a(f"s_load_dwordx2 s[32:33], s[0:1], {KA_WIN}")
    a("s_sub_u32 s24, s2, 224")
    a("s_and_b32 s25, s24, 7")
    a("s_lshr_b32 s26, s24, 3")
    a("s_lshl_b32 s27, s26, 9")
    a("v_add_u32 v2, s27, v0")
    a("v_lshlrev_b32 v2, 7, v2")
    a("s_waitcnt lgkmcnt(0)")
    srd(a, 36, 28, 2048*1280)
    srd(a, 40, 30, 640*3840)
    srd(a, 44, 32, 640*3072)
    if 'warm' in ABL:
        a("s_and_b32 s27, s25, 3")
        a("s_mul_i32 s27, s27, 655360")
        for i in range(3):
            a(f"buffer_load_dword v{8+i}, v2, s[36:39], s27 offen")
            a("s_add_u32 s27, s27, 262144")
        a("s_cmp_lt_u32 s25, 4")
        a("s_cbranch_scc0 K1_PFB")
        a("s_mov_b32 s27, 0")
        for i in range(10):
            a(f"buffer_load_dword v{12+i}, v2, s[40:43], s27 offen")
            a("s_add_u32 s27, s27, 262144")
        a("s_branch K1_PFC")
        a.label("K1_PFB")
        a("s_mov_b32 s27, 0")
        for i in range(8):
            a(f"buffer_load_dword v{12+i}, v2, s[44:47], s27 offen")
            a("s_add_u32 s27, s27, 262144")
        a("s_lshl_b32 s27, s26, 9")
        a("v_add_u32 v3, s27, v0")
        for i in range(2):
            a("v_lshrrev_b32 v4, 2, v3")
            a("v_mul_u32_u24 v4, 3840, v4")
            a("v_and_b32 v5, 3, v3")
            a("v_lshl_add_u32 v4, v5, 7, v4")
            a(f"buffer_load_dword v{22+i}, v4, s[40:43], 0 offen offset:512")
            a("v_add_u32 v3, 2048, v3")
        a.label("K1_PFC")
        a("s_waitcnt vmcnt(0)")
    a("s_lshl_b32 s25, s25, 2")
    a("s_add_u32 s25, s25, s26")
    a("s_lshl_b32 s25, s25, 18")
    a("v_lshlrev_b32 v1, 4, v0")
    srd(a, 12, 4, 2048*4096)
    srd(a, 16, 6, 640*1280)
    srd(a, 20, 8, 768*1280)
    for i in range(32):
        a(f"buffer_load_dwordx4 {v(8+4*(i%16),4)}, v1, s[12:15], s25 offen")
        a("s_add_u32 s25, s25, 8192")
        if i%2==1: a("s_waitcnt vmcnt(0)")
    a("s_mul_i32 s25, s24, 25600")
    for i in range(4):
        a(f"buffer_load_dwordx4 {v(72+4*i,4)}, v1, s[16:19], s25 offen")
        a("s_add_u32 s25, s25, 8192")
    a("s_mul_i32 s25, s24, 30720")
    for i in range(4):
        a(f"buffer_load_dwordx4 {v(88+4*i,4)}, v1, s[20:23], s25 offen")
        a("s_add_u32 s25, s25, 8192")
    a("s_waitcnt vmcnt(0)")
    a.label("K1_END")
    a("s_endpgm")
```

```python
from common import *
import os
STWG = int(os.environ.get('STWG','60'))
NSIDE = 0
NZP = 3
NRBK = 16
ABL2 = os.environ.get('ABL2','early').split(',')
RING = 0
TAB = 131072
HLP = 147456
K2_LDS = 147456 + 4096 + 5120

def gen_k2(a):
    a.raw(".globl k2_kernel"); a.raw(".p2align 8"); a.raw(".type k2_kernel,@function"); a.label("k2_kernel")
    a(f"s_cmp_ge_u32 s2, 256"); a("s_cbranch_scc1 K2_END")
    stamp(a,0); stamp_rt(a,1); trace_begin(a)
    a(f"s_load_dwordx2 s[4:5], s[0:1], {KA_WSP}")
    a(f"s_load_dwordx2 s[6:7], s[0:1], {KA_BSP}")
    a(f"s_load_dwordx2 s[8:9], s[0:1], {KA_WO}")
    a(f"s_load_dwordx2 s[10:11], s[0:1], {KA_WS}")
    a(f"s_load_dwordx2 s[40:41], s[0:1], {KA_WOUT}")
    VLANE, VC, VG = 1,2,3
    sW = 26
    a(f"v_lshrrev_b32 v6, 6, v0")
    a(f"v_and_b32 {v(VLANE)}, 63, v0")
    a(f"v_and_b32 {v(VC)}, 15, v0")
    a(f"v_readfirstlane_b32 {s(sW)}, v6")
    a(f"v_lshrrev_b32 {v(VG)}, 4, {v(VLANE)}")
    a("s_waitcnt lgkmcnt(0)")
    srd(a, 20, 10, WS_END)
    a(f"s_cmp_ge_u32 {s(sW)}, 4"); a("s_cbranch_scc1 K2_HELP")
    srd(a, 12, 4, 2048*4096)
    srd(a, 16, 6, 4096)
    sTB, sFB = 24, 25
    a(f"s_and_b32 s27, s2, 7")
    a(f"s_lshl_b32 s27, s27, 2")
    a(f"s_bfe_u32 s28, s2, 0x20003")
    a(f"s_add_u32 {s(sTB)}, s27, s28")
    a(f"s_lshr_b32 {s(sFB)}, s2, 5")
    VZ0, VZ1, VR, VM_ = 4,5,6,7
    R = 8; MF = 16; T = 20
    VD0, VD1, VF0, VF1 = 24,25,26,27
    WF = 40; ZS = 72; DC = 144; ACC = 160
    sZ = 27; sWD = 28; sRING = 29
    vm = VM()
    a(f"v_lshlrev_b32 {v(VZ0)}, 4, {v(VLANE)}")
    a(f"v_add_u32 {v(VZ1)}, 4096, {v(VZ0)}")
    a(f"s_lshl_b32 s32, {s(sFB)}, 6")
    a(f"s_lshl_b32 s33, {s(sW)}, 4")
    a(f"s_add_u32 s32, s32, s33")
    a(f"s_mul_i32 {s(sZ)}, s32, 6144")
    a(f"s_add_u32 {s(sZ)}, {s(sZ)}, {WS_Z2F}")
    a(f"v_lshrrev_b32 v28, 3, {v(VLANE)}")
    a(f"v_and_b32 v29, 7, {v(VLANE)}")
    a(f"v_lshrrev_b32 v30, 1, v28")
    a(f"v_xor_b32 v31, v29, v30")
    a(f"v_lshlrev_b32 v28, 12, v28")
    a(f"v_lshl_add_u32 {v(VD0)}, v31, 4, v28")
    a(f"v_xor_b32 {v(VD1)}, 64, {v(VD0)}")
    a(f"s_lshl_b32 s32, {s(sTB)}, 18")
    a(f"s_lshl_b32 s33, {s(sW)}, 10")
    a(f"s_add_u32 {s(sWD)}, s32, s33")
    a(f"s_lshl_b32 {s(sRING)}, {s(sW)}, 15")
    a(f"v_lshrrev_b32 v28, 1, {v(VC)}")
    a(f"v_xor_b32 v28, v28, {v(VG)}")
    a(f"v_lshlrev_b32 v29, 7, {v(VC)}")
    a(f"v_lshl_add_u32 v28, v28, 4, v29")
    a(f"v_add_u32 {v(VF0)}, {s(sRING)}, v28")
    a(f"v_xor_b32 {v(VF1)}, 64, {v(VF0)}")
    def dma(slot):
        for n in range(8):
            a(f"s_add_u32 m0, {s(sRING)}, {(slot%4)*8192+n*1024}")
            a(f"s_add_u32 s34, {s(sWD)}, {n*32768+slot*128}")
            a(f"buffer_load_dwordx4 {v(VD0 if n%2==0 else VD1)}, s[12:15], s34 offen lds")
            vm.issue(('w',slot))
    def zloads(u):
        b = ZS + 24*(u%3)
        for p in range(6):
            if p<4: a(f"buffer_load_dwordx4 {v(b+4*p,4)}, {v(VZ0)}, s[20:23], {s(sZ)} offen offset:{p*1024}")
            else:   a(f"buffer_load_dwordx4 {v(b+4*p,4)}, {v(VZ1)}, s[20:23], {s(sZ)} offen offset:{(p-4)*1024}")
            vm.issue(('z',u))
        a(f"s_add_u32 {s(sZ)}, {s(sZ)}, 6144")
    a(f"v_lshlrev_b32 v28, 6, {v(VLANE)}")
    a(f"s_lshl_b32 s32, {s(sW)}, 12")
    a(f"s_add_u32 s32, s32, {WS_ST}")
    SA = 144; SL = 160
    for z in range(NZP):
        for k in range(4):
            a(f"buffer_load_dwordx4 {v(SL+16*z+4*k,4)}, v28, s[20:23], s32 offen offset:{16*k}")
            vm.issue('s0')
        a(f"s_add_u32 s32, s32, 16384")
    dma(0); zloads(0)
    if 'early' in ABL2: zloads(1); dma(1); zloads(2); dma(2)
    a(f"s_waitcnt vmcnt({vm.need('s0')})")
    for i in range(16):
        a(f"v_add_f32 {v(SA+i)}, {v(SL+i)}, {v(SL+16+i)}")
    for i in range(16 if NZP==3 else 0):
        a(f"v_add_f32 {v(SA+i)}, {v(SA+i)}, {v(SL+32+i)}")
    stamp(a,2)
    a(f"s_mov_b32 s33, {f32bits(1.0/768)}")
    a(f"s_mov_b32 s34, {f32bits(1e-5)}")
    a(f"s_mov_b32 s35, 0xffff0000")
    for i in range(8):
        a(f"v_mul_f32 {v(SL+i)}, s33, {v(SA+2*i)}")
        a(f"v_mul_f32 {v(SL+8+i)}, s33, {v(SA+2*i+1)}")
    for i in range(8): a(f"v_fma_f32 {v(SL+8+i)}, -{v(SL+i)}, {v(SL+i)}, {v(SL+8+i)}")
    for i in range(8): a(f"v_max_f32 {v(SL+8+i)}, 0, {v(SL+8+i)}")
    for i in range(8): a(f"v_add_f32 {v(SL+8+i)}, s34, {v(SL+8+i)}")
    for i in range(8): a(f"v_rsq_f32 {v(SL+8+i)}, {v(SL+8+i)}")
    for i in range(4): a(f"v_cvt_pk_bf16_f32 {v(SL+16+i)}, {v(SL+2*i)}, {v(SL+2*i+1)}")
    for i in range(4):
        a(f"v_lshlrev_b32 {v(SL+24+2*i)}, 16, {v(SL+16+i)}")
        a(f"v_and_b32 {v(SL+24+2*i+1)}, s35, {v(SL+16+i)}")
    for i in range(8): a(f"v_sub_f32 {v(SL+24+i)}, {v(SL+i)}, {v(SL+24+i)}")
    for i in range(4): a(f"v_cvt_pk_bf16_f32 {v(SL+20+i)}, {v(SL+24+2*i)}, {v(SL+24+2*i+1)}")
    a(f"s_lshl_b32 s36, {s(sW)}, 12")
    a(f"s_add_u32 s36, s36, {TAB}")
    a(f"v_lshlrev_b32 v28, 5, {v(VLANE)}")
    a(f"v_add_u32 v28, s36, v28")
    a(f"v_lshlrev_b32 v29, 4, {v(VLANE)}")
    a(f"v_add_u32 v29, s36, v29")
    a(f"ds_write_b128 v28, {v(SL+8,4)}")
    a(f"ds_write_b128 v28, {v(SL+12,4)} offset:16")
    a(f"ds_write_b128 v29, {v(SL+16,4)} offset:2048")
    a(f"ds_write_b128 v29, {v(SL+20,4)} offset:3072")
    a(f"v_lshlrev_b32 {v(VR)}, 5, {v(VG)}")
    a(f"v_add_u32 {v(VR)}, s36, {v(VR)}")
    a(f"v_and_b32 v28, 1, {v(VC)}")
    a(f"v_lshlrev_b32 v28, 10, v28")
    a(f"v_lshl_add_u32 v28, {v(VG)}, 4, v28")
    a(f"v_add_u32 {v(VM_)}, s36, v28")
    if 'early' not in ABL2: zloads(1); dma(1); zloads(2)
    a("s_waitcnt lgkmcnt(0)")
    def rread(u):
        a(f"ds_read_b128 {v(R,4)}, {v(VR)} offset:{128*u}")
        a(f"ds_read_b128 {v(R+4,4)}, {v(VR)} offset:{128*u+16}")
    def mread(u):
        a(f"ds_read_b128 {v(MF,4)}, {v(VM_)} offset:{2048+64*u}")
    def wread(u):
        b = WF + 16*(u%2)
        slot = u>>1
        for q in range(4):
            a(f"ds_read_b128 {v(b+4*q,4)}, {v(VF0 if u%2==0 else VF1)} offset:{(slot%4)*8192+q*2048}")
    Z1R = ZS+24; BS = ZS+24+12
    def epi_loads():
        a(f"s_lshl_b32 s32, {s(sTB)}, 6")
        a(f"s_lshl_b32 s33, {s(sW)}, 4")
        a(f"s_add_u32 s32, s32, s33")
        a(f"v_add_u32 v28, s32, {v(VC)}")
        a(f"v_lshlrev_b32 v29, 1, v28")
        a(f"buffer_load_ushort {v(BS)}, v29, s[16:19], 0 offen")
        vm.issue('e')
        a(f"v_mul_u32_u24 v29, 1536, v28")
        a(f"v_mul_u32_u24 v30, 48, {v(VG)}")
        a(f"v_add_u32 v29, v29, v30")
        a(f"s_mul_i32 s34, {s(sFB)}, 192")
        a(f"s_add_u32 s34, s34, {WS_Z1}")
        for m in range(3):
            a(f"buffer_load_dwordx4 {v(Z1R+4*m,4)}, v29, s[20:23], s34 offen offset:{16*m}")
            vm.issue('e')
    def scale_ops(u):
        b = WF + 16*(u%2)
        ops=[]
        for q in range(4):
            for d in range(4):
                w = b+4*q+d
                t0, t1 = T+2*(d%2), T+2*(d%2)+1
                ops += [f"v_lshlrev_b32 {v(t0)}, 16, {v(w)}", f"v_and_b32 {v(t1)}, s35, {v(w)}",
                        f"v_mul_f32 {v(t0)}, {v(t0)}, {v(R+2*d)}", f"v_mul_f32 {v(t1)}, {v(t1)}, {v(R+2*d+1)}",
                        f"v_cvt_pk_bf16_f32 {v(w)}, {v(t0)}, {v(t1)}"]
        return ops
    rread(0); mread(0)
    a(f"s_waitcnt vmcnt({vm.need(('w',0))})")
    wread(0)
    a("s_waitcnt lgkmcnt(0)")
    for o in scale_ops(0): a(o)
    rread(1); wread(1)
    if 'early' not in ABL2: dma(2)
    dma(3)
    stamp(a,3)
    for u in range(16):
        b = WF + 16*(u%2)
        zb = ZS + 24*(u%3)
        a(f"s_waitcnt vmcnt({vm.need(('z',u))})")
        for q in range(4):
            c = "0" if u==0 else v(DC+4*q,4)
            a(f"v_mfma_f32_16x16x32_bf16 {v(DC+4*q,4)}, {v(MF,4)}, {v(b+4*q,4)}, {c}")
        if u+1<16: mread(u+1)
        ops = scale_ops(u+1) if u+1<16 else []
        k = 0
        for p in range(6):
            for q in range(4):
                acc = ACC+4*(4*p+q)
                c = "0" if u==0 else v(acc,4)
                a(f"v_mfma_f32_16x16x32_bf16 {v(acc,4)}, {v(zb+4*p,4)}, {v(b+4*q,4)}, {c}")
                if p==0 and q==3 and ops: a("s_waitcnt lgkmcnt(1)")
                if p>=1:
                    for o in ops[k:k+4]: a(o)
                    k += 4
        if u+2<16:
            rread(u+2)
            if (u+2)%2==0: a(f"s_waitcnt vmcnt({vm.need(('w',(u+2)>>1))})")
            wread(u+2)
        if u+1<16: a(f"s_waitcnt lgkmcnt({6 if u+2<16 else 0})")
        if u%2==0 and (u>>1)+4 < 8: dma((u>>1)+4)
        if u+3<16: zloads(u+3)
        if u==13: epi_loads()
        if u in (0,4,10): stamp(a, {0:4,4:5,10:6}[u])
    stamp(a,7)
    a("s_barrier")
    a(f"v_lshlrev_b32 v22, 3, {v(VLANE)}")
    for q in range(4):
        lab = a.newlabel("K2_SK")
        a(f"s_cmp_eq_u32 {s(sW)}, {q}")
        a(f"s_cbranch_scc1 {lab}")
        a(f"s_cmp_gt_u32 {s(sW)}, {q}")
        a(f"s_cselect_b32 s36, 1, 0")
        a(f"s_sub_u32 s36, {s(sW)}, s36")
        a(f"s_add_u32 s36, s36, {3*q}")
        a(f"s_mul_i32 s37, s36, 6144")
        a(f"v_add_u32 v23, s37, {v(VZ0)}")
        for p in range(6):
            a(f"ds_write_b128 v23, {v(ACC+4*(4*p+q),4)} offset:{p*1024}")
        a(f"s_lshl_b32 s37, s36, 9")
        a(f"v_add_u32 v23, s37, v22")
        a(f"v_add_u32 v23, 73728, v23")
        a(f"ds_write_b64 v23, {v(DC+4*q,2)}")
        a.label(lab)
    FIN = 40
    for q in range(4):
        lab = a.newlabel("K2_MV")
        a(f"s_cmp_lg_u32 {s(sW)}, {q}")
        a(f"s_cbranch_scc1 {lab}")
        for p in range(6):
            for r in range(4):
                a(f"v_mov_b32 {v(FIN+4*p+r)}, {v(ACC+4*(4*p+q)+r)}")
        a(f"v_mov_b32 {v(FIN+24)}, {v(DC+4*q)}")
        a(f"v_mov_b32 {v(FIN+25)}, {v(DC+4*q+1)}")
        a.label(lab)
    a("s_waitcnt lgkmcnt(0)")
    a("s_barrier")
    a(f"s_mul_i32 s37, {s(sW)}, {3*6144}")
    a(f"v_add_u32 v23, s37, {v(VZ0)}")
    a(f"s_mul_i32 s37, {s(sW)}, {3*512}")
    a(f"s_add_u32 s37, s37, 73728")
    a(f"v_add_u32 v22, s37, v22")
    RD = 112
    for src in range(3):
        for p in range(6):
            a(f"ds_read_b128 {v(RD+28*src+4*p,4)}, v23 offset:{src*6144+p*1024}")
        a(f"ds_read_b64 {v(RD+28*src+24,2)}, v22 offset:{src*512}")
    a("s_waitcnt lgkmcnt(0)")
    for src in range(3):
        for i in range(26):
            a(f"v_add_f32 {v(FIN+i)}, {v(FIN+i)}, {v(RD+28*src+i)}")
    a("s_waitcnt vmcnt(0)")
    a(f"v_lshlrev_b32 {v(BS)}, 16, {v(BS)}")
    a(f"v_add_f32 {v(FIN+24)}, {v(FIN+24)}, {v(FIN+25)}")
    a(f"v_sub_f32 {v(BS)}, {v(BS)}, {v(FIN+24)}")
    a(f"s_lshl_b32 s32, {s(sTB)}, 2")
    a(f"s_add_u32 s32, s32, {s(sW)}")
    a(f"s_mul_i32 s32, s32, {44*1024}")
    a(f"s_add_u32 s32, s32, {WS_ACT}")
    a(f"s_mul_i32 s33, {s(sFB)}, 12")
    a(f"s_add_u32 s33, s33, 80")
    a(f"v_mul_u32_u24 v20, 3, {v(VG)}")
    a(f"v_add_u32 v20, s33, v20")
    for m in range(3):
        a(f"v_add_u32 v21, {m}, v20")
        a(f"v_lshlrev_b32 v21, 8, v21")
        a(f"v_lshl_add_u32 v21, {v(VC)}, 4, v21")
        for hh in range(2):
            p = 2*m+hh
            zr = Z1R+4*m+2*hh
            a(f"v_lshlrev_b32 v68, 16, {v(zr)}")
            a(f"v_and_b32 v69, s35, {v(zr)}")
            a(f"v_lshlrev_b32 v70, 16, {v(zr+1)}")
            a(f"v_and_b32 v71, s35, {v(zr+1)}")
            for r in range(4): a(f"v_add_f32 {v(FIN+4*p+r)}, {v(FIN+4*p+r)}, {v(BS)}")
            for r in range(4): a(f"v_mul_f32 {v(FIN+4*p+r)}, {v(FIN+4*p+r)}, v{68+r}")
            a(f"v_cvt_pk_bf16_f32 {v(RD+4*m+2*hh)}, {v(FIN+4*p)}, {v(FIN+4*p+1)}")
            a(f"v_cvt_pk_bf16_f32 {v(RD+4*m+2*hh+1)}, {v(FIN+4*p+2)}, {v(FIN+4*p+3)}")
        a(f"buffer_store_dwordx4 {v(RD+4*m,4)}, v21, s[20:23], s32 offen")
    a("s_waitcnt vmcnt(0)") if STAMPS else None
    stamp(a,8); stamp_rt(a,9)
    a("s_waitcnt lgkmcnt(0)") if STAMPS else None
    stamp_flush(a, 10, STWG, sW, 0)
    trace_end(a,1,sW)
    a("s_endpgm")

    a.label("K2_HELP")
    if 'nohelp' in ABL2: a("s_endpgm")
    if 'prio' in ABL2: a("s_setprio 2")
    a(f"s_mov_b32 s35, 0xffff0000")
    a(f"s_cmp_eq_u32 {s(sW)}, 5"); a("s_cbranch_scc1 K2_HM")
    a(f"s_cmp_eq_u32 {s(sW)}, 6"); a("s_cbranch_scc1 K2_HW")
    ZP = 8; PQ = 136
    a(f"s_and_b32 s24, s2, 7")
    a(f"s_lshr_b32 s25, s2, 3")
    a(f"v_min_u32 v4, 19, {v(VLANE)}")
    a(f"v_mul_u32_u24 v5, 13108, v4")
    a(f"v_lshrrev_b32 v5, 16, v5")
    a(f"v_mul_u32_u24 v6, 5, v5")
    a(f"v_sub_u32 v6, v4, v6")
    a(f"v_mul_u32_u24 v5, 1680, v5")
    a(f"v_lshl_add_u32 v5, v6, 4, v5")
    a(f"s_mul_i32 s27, s24, {4*1680}")
    a(f"s_add_u32 s27, s27, {WS_KVP+1600}")
    for rb in range(NRBK):
        a(f"buffer_load_dwordx4 {v(ZP+4*rb,4)}, v5, s[20:23], s27 offen")
        a(f"s_add_u32 s27, s27, 53760")
    a(f"s_lshl_b32 s27, s25, 6")
    a(f"v_add_u32 v7, s27, {v(VLANE)}")
    a(f"v_mul_u32_u24 v4, 1280, v7")
    a(f"s_mul_i32 s27, s24, 160")
    for k in range(10):
        a(f"buffer_load_dwordx4 {v(PQ+4*k,4)}, v4, s[20:23], s27 offen offset:{16*k}")
    a("s_waitcnt vmcnt(10)")
    for rb in range(1,NRBK):
        for i in range(4): a(f"v_add_f32 {v(ZP+i)}, {v(ZP+i)}, {v(ZP+4*rb+i)}")
    a(f"v_lshlrev_b32 v4, 4, {v(VLANE)}")
    a(f"v_add_u32 v4, {HLP}, v4")
    a(f"v_cmp_gt_u32 vcc, 20, {v(VLANE)}")
    a("s_and_saveexec_b64 s[36:37], vcc")
    a(f"ds_write_b128 v4, {v(ZP,4)}")
    a("s_mov_b64 exec, s[36:37]")
    a("s_waitcnt lgkmcnt(0)")
    ZR = 176
    a(f"v_mov_b32 v4, {HLP}")
    for k in range(20):
        a(f"ds_read_b128 {v(ZR+4*k,4)}, v4 offset:{16*k}")
    a(f"s_mov_b32 s39, {f32bits(1e-6)}")
    a(f"v_lshrrev_b32 v4, 4, v7")
    a(f"v_mul_u32_u24 v4, 45056, v4")
    a(f"v_lshl_add_u32 v4, {v(VC)}, 4, v4")
    a(f"s_mul_i32 s33, s24, 2560")
    a(f"s_add_u32 s33, s33, {WS_ACT}")
    a("s_waitcnt vmcnt(0) lgkmcnt(0)")
    U = 110
    for hh in range(4):
        for m in range(10):
            a(f"v_lshlrev_b32 {v(U+2*m)}, 16, {v(PQ+10*hh+m)}")
            a(f"v_and_b32 {v(U+2*m+1)}, s35, {v(PQ+10*hh+m)}")
        a(f"v_mul_f32 v130, {v(U)}, {v(ZR+20*hh)}")
        a(f"v_mul_f32 v131, {v(U+1)}, {v(ZR+20*hh+1)}")
        for d in range(2,20):
            a(f"v_fmac_f32 v{130+d%2}, {v(U+d)}, {v(ZR+20*hh+d)}")
        a("v_add_f32 v130, v130, v131")
        a("v_add_f32 v130, s39, v130")
        a("v_rcp_f32 v130, v130")
        a.nop(1)
        for d in range(20): a(f"v_mul_f32 {v(U+d)}, {v(U+d)}, v130")
        for m in range(10): a(f"v_cvt_pk_bf16_f32 {v(PQ+10*hh+m)}, {v(U+2*m)}, {v(U+2*m+1)}")
    for k in range(10):
        a(f"buffer_store_dwordx4 {v(PQ+4*k,4)}, v4, s[20:23], s33 offen offset:{256*k}")
    trace_end(a,1,sW)
    a("s_endpgm")
    a.label("K2_HM")
    srd(a, 12, 8, 640*1280)
    a(f"s_and_b32 s28, s2, 31")
    a(f"s_lshr_b32 s29, s2, 5")
    KP = 8; KP2 = 72
    HKV = HLP + 1024
    HWO = HLP + 4096
    a(f"s_mul_i32 s32, s28, {20*1280}")
    a(f"s_mul_i32 s33, s29, 160")
    a(f"s_add_u32 s32, s32, s33")
    for n in range(5):
        a(f"v_add_u32 v4, {64*n}, {v(VLANE)}")
        a(f"v_mul_u32_u24 v5, 6554, v4")
        a(f"v_lshrrev_b32 v5, 16, v5")
        a(f"v_mul_u32_u24 v6, 10, v5")
        a(f"v_sub_u32 v6, v4, v6")
        a(f"v_mul_u32_u24 v5, 1280, v5")
        a(f"v_lshl_add_u32 v5, v6, 4, v5")
        a(f"s_mov_b32 m0, {HWO+1024*n}")
        a("s_nop 0")
        a(f"buffer_load_dwordx4 v5, s[12:15], s32 offen lds")
    a(f"v_lshlrev_b32 v5, 4, {v(VLANE)}")
    a(f"v_add_u32 v6, 1024, v5")
    a(f"v_min_u32 v6, 1584, v6")
    a(f"s_mul_i32 s27, s28, 1680")
    a(f"s_add_u32 s27, s27, {WS_KVP}")
    KP = 8; KP2 = 72; KP3 = 148; KP4 = 200
    for rb in range(16):
        a(f"buffer_load_dwordx4 {v(KP+4*rb,4)}, v5, s[20:23], s27 offen")
        a(f"buffer_load_dwordx4 {v(KP2+4*rb,4)}, v6, s[20:23], s27 offen")
        a(f"s_add_u32 s27, s27, 53760")
    if NRBK == 32:
        a("s_waitcnt vmcnt(0)")
        for rb in range(1,16):
            for i in range(4): a(f"v_add_f32 {v(KP+i)}, {v(KP+i)}, {v(KP+4*rb+i)}")
            for i in range(4): a(f"v_add_f32 {v(KP2+i)}, {v(KP2+i)}, {v(KP2+4*rb+i)}")
        for i in range(4):
            a(f"v_mov_b32 v{148+i}, {v(KP+i)}"); a(f"v_mov_b32 v{152+i}, {v(KP2+i)}")
        for rb in range(16):
            a(f"buffer_load_dwordx4 {v(KP+4*rb,4)}, v5, s[20:23], s27 offen")
            a(f"buffer_load_dwordx4 {v(KP2+4*rb,4)}, v6, s[20:23], s27 offen")
            a(f"s_add_u32 s27, s27, 53760")
    for i in range(4): a(f"v_mov_b32 v{140+i}, 0")
    a(f"v_add_u32 v7, {HKV+1600}, v5")
    a(f"v_cmp_gt_u32 vcc, 60, {v(VLANE)}")
    a("s_and_saveexec_b64 s[36:37], vcc")
    a(f"ds_write_b128 v7, v[140:143]")
    a("s_mov_b64 exec, s[36:37]")
    a(f"v_mul_u32_u24 v136, 640, {v(VG)}")
    a(f"v_lshl_add_u32 v136, {v(VC)}, 2, v136")
    a(f"v_add_u32 v136, {HKV}, v136")
    a(f"v_bfe_u32 v137, {v(VLANE)}, 2, 2")
    a(f"v_lshl_add_u32 v137, {v(VG)}, 3, v137")
    a(f"v_mul_u32_u24 v137, 160, v137")
    a(f"v_and_b32 v138, 3, {v(VLANE)}")
    a(f"v_mul_u32_u24 v138, 40, v138")
    a(f"v_add_u32 v137, v137, v138")
    a(f"v_add_u32 v137, {HWO}, v137")
    a("s_waitcnt vmcnt(0)")
    for rb in range(1,16):
        for i in range(4): a(f"v_add_f32 {v(KP+i)}, {v(KP+i)}, {v(KP+4*rb+i)}")
        for i in range(4): a(f"v_add_f32 {v(KP2+i)}, {v(KP2+i)}, {v(KP2+4*rb+i)}")
    if NRBK == 32:
        for i in range(4):
            a(f"v_add_f32 {v(KP+i)}, {v(KP+i)}, v{148+i}"); a(f"v_add_f32 {v(KP2+i)}, {v(KP2+i)}, v{152+i}")
    a(f"v_add_u32 v5, {HKV}, v5")
    a(f"v_add_u32 v6, {HKV}, v6")
    a(f"ds_write_b128 v5, {v(KP,4)}")
    a(f"ds_write_b128 v6, {v(KP2,4)}")
    BF = 160
    for p in range(5):
        for hh in range(2):
            a(f"ds_read_b64_tr_b16 {v(BF+4*p+2*hh,2)}, v137 offset:{8*p+640*hh}")
    a("s_waitcnt lgkmcnt(0)")
    for fr in range(2):
        for t in range(8):
            a(f"ds_read_b32 v{8+8*fr+t}, v136 offset:{80*t+64*fr}")
    a(f"s_mul_i32 s33, s28, 20")
    a(f"s_mul_i32 s34, s29, {44*5120}")
    a(f"s_add_u32 s34, s34, {WS_WCT}")
    for fr in range(2):
        a(f"v_lshlrev_b32 v30, 2, {v(VG)}")
        a(f"v_add_u32 v30, s33, v30")
        if fr: a(f"v_add_u32 v30, 16, v30")
        a(f"v_lshrrev_b32 v31, 5, v30")
        a(f"v_mul_u32_u24 v31, 5120, v31")
        a(f"v_bfe_u32 v32, v30, 3, 2")
        a(f"v_lshl_add_u32 v31, v32, 8, v31")
        a(f"v_and_b32 v32, 7, v30")
        a(f"v_lshl_add_u32 v31, v32, 1, v31")
        a(f"v_lshl_add_u32 v{34+fr}, {v(VC)}, 4, v31")
    a("s_waitcnt lgkmcnt(0)")
    for fr in range(2):
        for d in range(4):
            a(f"v_cvt_pk_bf16_f32 v{24+4*fr+d if False else 40+4*fr+d}, v{8+8*fr+2*d}, v{8+8*fr+2*d+1}")
    a.nop(2)
    DM = 48
    for fr in range(2):
        for p in range(5):
            a(f"v_mfma_f32_16x16x32_bf16 {v(DM+4*(5*fr+p),4)}, {v(40+4*fr,4)}, {v(BF+4*p,4)}, 0")
    a.nop(8)
    a(f"v_cmp_eq_u32 s[36:37], 0, {v(VG)}")
    for fr in range(2):
        if fr: a("s_mov_b64 exec, s[36:37]")
        for p in range(5):
            t = DM+4*(5*fr+p)
            a(f"v_cvt_pk_bf16_f32 {v(t)}, {v(t)}, {v(t+1)}")
            a(f"v_cvt_pk_bf16_f32 {v(t+1)}, {v(t+2)}, {v(t+3)}")
            if p<4: a(f"buffer_store_dwordx2 {v(t,2)}, v{34+fr}, s[20:23], s34 offen offset:{1024*p}")
            else:
                a(f"s_add_u32 s38, s34, 4096")
                a(f"buffer_store_dwordx2 {v(t,2)}, v{34+fr}, s[20:23], s38 offen")
    a("s_mov_b64 exec, -1")
    trace_end(a,1,sW)
    a("s_endpgm")
    a.label("K2_HW")
    srd(a, 16, 40, 768*1280)
    a(f"s_mul_i32 s33, s2, 60")
    a(f"v_add_u32 v110, s33, {v(VLANE)}")
    a(f"v_mul_u32_u24 v111, 6554, v110")
    a(f"v_lshrrev_b32 v111, 20, v111")
    a(f"v_mul_u32_u24 v112, 160, v111")
    a(f"v_sub_u32 v112, v110, v112")
    a(f"v_mul_u32_u24 v113, {8*1280}, v111")
    a(f"v_lshl_add_u32 v113, v112, 3, v113")
    TR = 136
    for j in range(8):
        off = j*1280
        if off < 4096: a(f"buffer_load_dwordx2 {v(TR+2*j,2)}, v113, s[16:19], 0 offen offset:{off}")
        else:
            a(f"s_movk_i32 s34, {off}")
            a(f"buffer_load_dwordx2 {v(TR+2*j,2)}, v113, s[16:19], s34 offen")
    a(f"s_mov_b32 s30, 0x05040100")
    a(f"s_mov_b32 s31, 0x07060302")
    a(f"s_mov_b32 s32, {WS_WCT}")
    a(f"v_mul_u32_u24 v8, 3277, v112")
    a(f"v_lshrrev_b32 v8, 16, v8")
    a(f"v_mul_u32_u24 v9, 20, v8")
    a(f"v_sub_u32 v9, v112, v9")
    a(f"v_mul_u32_u24 v10, 52, v9")
    a(f"v_lshrrev_b32 v10, 8, v10")
    a(f"v_mul_u32_u24 v11, 5, v10")
    a(f"v_sub_u32 v11, v9, v11")
    a(f"v_add_u32 v111, 80, v111")
    a(f"v_lshrrev_b32 v12, 2, v111")
    a(f"v_and_b32 v13, 3, v111")
    a(f"v_mul_u32_u24 v8, 44, v8")
    a(f"v_add_u32 v8, v8, v12")
    a(f"v_mul_u32_u24 v8, 5, v8")
    a(f"v_add_u32 v8, v8, v11")
    a(f"v_lshlrev_b32 v8, 10, v8")
    a(f"v_lshl_add_u32 v8, v13, 8, v8")
    a(f"v_lshl_add_u32 v8, v10, 6, v8")
    a("s_waitcnt vmcnt(0)")
    for f in range(4):
        sel = 30 if (f&1)==0 else 31
        for d in range(4):
            a(f"v_perm_b32 {v(TR+16+4*f+d)}, {v(TR+2*(2*d+1)+(f>>1))}, {v(TR+2*(2*d)+(f>>1))}, {s(sel)}")
    a(f"v_cmp_gt_u32 vcc, 60, {v(VLANE)}")
    a("s_and_saveexec_b64 s[34:35], vcc")
    for f in range(4):
        a(f"buffer_store_dwordx4 {v(TR+16+4*f,4)}, v8, s[20:23], s32 offen offset:{16*f}")
    trace_end(a,1,sW)
    a.label("K2_END")
    a("s_endpgm")
```

```python
from common import *
import os
ABL = os.environ.get('ABL','').split(',')

LOG2E = 1.4426950408889634
GA = -2.0*0.7978845608028654*LOG2E
GB = GA*0.044715

def gelu4(a, xs, ts, sB, vA):
    for x,t in zip(xs,ts): a(f"v_mul_f32 {v(t)}, {v(x)}, {v(x)}")
    for x,t in zip(xs,ts): a(f"v_fma_f32 {v(t)}, {v(t)}, {s(sB)}, {v(vA)}")
    for x,t in zip(xs,ts): a(f"v_mul_f32 {v(t)}, {v(t)}, {v(x)}")
    for x,t in zip(xs,ts): a(f"v_exp_f32 {v(t)}, {v(t)}")
    for x,t in zip(xs,ts): a(f"v_add_f32 {v(t)}, 1.0, {v(t)}")
    for x,t in zip(xs,ts): a(f"v_rcp_f32 {v(t)}, {v(t)}")
    for x,t in zip(xs,ts): a(f"v_mul_f32 {v(x)}, {v(x)}, {v(t)}")

def phi4(a, xs, ts, sL, sEps):
    for x,t in zip(xs,ts): a(f"v_mul_f32 {v(t)}, {s(sL)}, {v(x)}")
    for x,t in zip(xs,ts): a(f"v_min_f32 {v(t)}, 0, {v(t)}")
    for x,t in zip(xs,ts): a(f"v_exp_f32 {v(t)}, {v(t)}")
    for x,t in zip(xs,ts): a(f"v_max_f32 {v(x)}, 0, {v(x)}")
    for x,t in zip(xs,ts): a(f"v_add_f32 {v(x)}, {s(sEps)}, {v(x)}")
    for x,t in zip(xs,ts): a(f"v_add_f32 {v(x)}, {v(x)}, {v(t)}")

def dpp_red16(a, regs):
    for rot in (8,4,2,1):
        for r in regs:
            a(f"v_add_f32_dpp {v(r)}, {v(r)}, {v(r)} row_ror:{rot} row_mask:0xf bank_mask:0xf")
        if len(regs) < 3:
            a.nop(2)

TQ, TK, TV, TZ1, TZ2 = 0,1,2,3,4
JOBS = [
 [(TK,0),(TK,1),(TV,0),(TV,1)], [(TK,2),(TK,3),(TV,2),(TV,3)], [(TK,4),(TK,5),(TV,4),(TV,5)],
 [(TK,6),(TK,7),(TV,6),(TV,7)], [(TK,8),(TK,9),(TV,8),(TV,9)], [(TK,10),(TQ,8),(TV,10),(TQ,9)],
 [(TQ,0),(TQ,1),(TQ,2),(TQ,3)],
 [(TQ,4),(TQ,5),(TQ,6),(TQ,7)],
 [(TZ1,0),(TZ1,1),(TZ1,2),(TZ1,3)], [(TZ1,4),(TZ1,5),(TZ1,6),(TZ1,7)], [(TZ1,8),(TZ1,9),(TZ1,10),(TZ1,11)],
 [(TZ2,0),(TZ2,1),(TZ2,2),(TZ2,3)], [(TZ2,4),(TZ2,5),(TZ2,6),(TZ2,7)], [(TZ2,8),(TZ2,9),(TZ2,10),(TZ2,11)],
]
STAGE = 49152
LDS_ST = 3*STAGE
LDS_CS = LDS_ST + 1024
LDS_ZS = LDS_CS + 1024
K1_LDS = LDS_ZS + 1024
KVPITCH = 144
NWG1 = 256

def gen_k1(a):
    a.raw(".globl k1_kernel"); a.raw(".p2align 8"); a.raw(".type k1_kernel,@function"); a.label("k1_kernel")
    a(f"s_cmp_ge_u32 s2, 256"); a("s_cbranch_scc1 K1_END")
    a(f"s_cmp_ge_u32 s2, 224"); a("s_cbranch_scc1 K1_PF" if 'nopf' not in ABL else "s_cbranch_scc1 K1_END")
    if 'exit0' in ABL: a("s_endpgm")
    stamp(a,0); stamp_rt(a,1); trace_begin(a)
    a(f"s_load_dwordx2 s[4:5], s[0:1], {KA_X}")
    a(f"s_load_dwordx2 s[6:7], s[0:1], {KA_WQKV}")
    a(f"s_load_dwordx2 s[8:9], s[0:1], {KA_WIN}")
    a(f"s_load_dwordx2 s[10:11], s[0:1], {KA_WS}")
    VLANE, VC, VG = 1, 2, 3
    VDX, VDW0, VDW1 = 8, 9, 10
    XB, WB = 11, 12
    XA, WA = 16, 18
    ONE = 24
    S1, S2 = 28, 29
    UT = 32
    XF = 40
    WF = 72
    CSA = 104
    ACC = 192
    sRB, sCG, sW, sTY, sIX, sRH, sCQ = 24,25,26,27,28,29,30
    sXS, sWS, sPITCH, sMX, sMW = 31,32,33,34,35
    a(f"s_and_b32 s36, s2, 3")
    a(f"s_lshl_b32 s36, s36, 2")
    a(f"s_bfe_u32 s37, s2, 0x20003")
    a(f"s_add_u32 {s(sRB)}, s36, s37")
    a(f"s_bfe_u32 s36, s2, 0x10002")
    a(f"s_mul_i32 s36, s36, 7")
    a(f"s_lshr_b32 s37, s2, 5")
    a(f"s_add_u32 {s(sCG)}, s36, s37")
    a(f"v_lshrrev_b32 v4, 6, v0")
    a(f"v_and_b32 {v(VLANE)}, 63, v0")
    a(f"v_and_b32 {v(VC)}, 15, v0")
    a(f"v_readfirstlane_b32 {s(sW)}, v4")
    a(f"v_lshrrev_b32 {v(VG)}, 4, {v(VLANE)}")
    for cg in range(14):
        val = 0
        for w,(ty,ix) in enumerate(JOBS[cg]):
            val |= ((ty<<5)|ix) << (8*w)
        lab = a.newlabel("K1_J")
        a(f"s_cmp_lg_u32 {s(sCG)}, {cg}")
        a(f"s_cbranch_scc1 {lab}")
        a(f"s_mov_b32 s38, {val}")
        a.label(lab)
    a(f"s_lshr_b32 {s(sRH)}, {s(sW)}, 2")
    a(f"s_and_b32 {s(sCQ)}, {s(sW)}, 3")
    a(f"s_lshl_b32 s36, {s(sCQ)}, 3")
    a(f"s_lshr_b32 s36, s38, s36")
    a(f"s_and_b32 {s(sIX)}, s36, 31")
    a(f"s_bfe_u32 {s(sTY)}, s36, 0x30005")
    a(f"s_lshr_b32 s39, {s(sW)}, 1")
    a(f"s_lshl_b32 s36, s39, 3")
    a(f"s_lshr_b32 s36, s38, s36")
    a(f"s_and_b32 s40, s36, 31")
    a(f"s_bfe_u32 s41, s36, 0x30005")
    a(f"s_lshl_b32 s36, s40, 7")
    a(f"s_mul_i32 s37, s40, 120")
    a(f"s_mov_b32 {s(sWS)}, s36")
    a(f"s_add_u32 s42, s37, 1280")
    a(f"s_cmp_eq_u32 s41, {TK}"); a(f"s_cselect_b32 {s(sWS)}, s42, {s(sWS)}")
    a(f"s_add_u32 s42, s37, 2560")
    a(f"s_cmp_eq_u32 s41, {TV}"); a(f"s_cselect_b32 {s(sWS)}, s42, {s(sWS)}")
    a(f"s_add_u32 s42, s36, 1536")
    a(f"s_cmp_eq_u32 s41, {TZ2}"); a(f"s_cselect_b32 {s(sWS)}, s42, {s(sWS)}")
    a(f"s_cmp_lt_u32 s41, {TZ1}")
    a(f"s_movk_i32 {s(sPITCH)}, 3072")
    a(f"s_cselect_b32 {s(sPITCH)}, 3840, {s(sPITCH)}")
    a(f"v_lshrrev_b32 v4, 3, {v(VLANE)}")
    a(f"v_and_b32 v5, 7, {v(VLANE)}")
    a(f"v_bfe_u32 v6, v4, 1, 1")
    a(f"v_xor_b32 v6, v5, v6")
    a(f"v_mul_lo_u32 v7, v4, {s(sPITCH)}")
    a(f"v_lshl_add_u32 {v(VDW0)}, v6, 4, v7")
    a(f"s_and_b32 s36, {s(sW)}, 1")
    a(f"s_lshl_b32 s36, s36, 5")
    a(f"s_mul_i32 s36, s36, {s(sPITCH)}")
    a(f"s_add_u32 {s(sWS)}, {s(sWS)}, s36")
    a(f"s_lshl_b32 s36, {s(sCQ)}, 1")
    a(f"v_bfe_u32 v6, v4, 1, 1")
    a(f"v_or_b32 v6, s36, v6")
    a(f"v_xor_b32 v6, v5, v6")
    a(f"v_mul_u32_u24 v7, 1280, v4")
    a(f"v_lshl_add_u32 {v(VDX)}, v6, 4, v7")
    a(f"s_lshl_b32 s36, {s(sRB)}, 7")
    a(f"s_lshl_b32 s37, {s(sW)}, 4")
    a(f"s_add_u32 s36, s36, s37")
    a(f"s_mul_i32 {s(sXS)}, s36, 1280")
    a(f"s_lshl_b32 {s(sMX)}, {s(sW)}, 11")
    a(f"s_lshl_b32 {s(sMW)}, {s(sW)}, 12")
    a(f"s_add_u32 {s(sMW)}, {s(sMW)}, 16384")
    a("s_waitcnt lgkmcnt(0)")
    srd(a, 12, 4, 2048*1280)
    srd(a, 20, 10, WS_END)
    a(f"s_and_b32 s7, s7, 0xffff")
    a(f"s_and_b32 s9, s9, 0xffff")
    a(f"s_cmp_lt_u32 s41, {TZ1}")
    a(f"s_cselect_b32 s16, s6, s8")
    a(f"s_cselect_b32 s17, s7, s9")
    a(f"s_mov_b32 s18, {640*3072}")
    a(f"s_cselect_b32 s18, {640*3840}, s18")
    a(f"s_mov_b32 s19, 0x00020000")
    a(f"s_lshl_b32 s43, {s(sPITCH)}, 3")
    a(f"s_lshl_b32 s44, {s(sPITCH)}, 6")
    def dma(st):
        slot = (st%3)*STAGE
        for n in range(2):
            a(f"s_add_u32 m0, {s(sMX)}, {slot+1024*n}")
            a(f"s_add_u32 s45, {s(sXS)}, {10240*n+128*st}")
            a(f"buffer_load_dwordx4 {v(VDX)}, s[12:15], s45 offen lds")
        a(f"s_mov_b32 s45, {s(sWS)}")
        for n in range(4):
            a(f"s_add_u32 m0, {s(sMW)}, {slot+1024*n}")
            if n: a(f"s_add_u32 s45, s45, s43")
            else: a("s_nop 0")
            a(f"buffer_load_dwordx4 {v(VDW0)}, s[16:19], s45 offen lds")
        a(f"s_add_u32 {s(sWS)}, {s(sWS)}, s44")
    dma(0); dma(1)
    VTX, VTW = 120, 121
    a(f"v_mul_u32_u24 {v(VTX)}, 1280, {v(VC)}")
    a(f"v_and_b32 v4, 31, {v(VLANE)}")
    a(f"v_mul_lo_u32 {v(VTW)}, v4, {s(sPITCH)}")
    a(f"v_lshrrev_b32 v4, 5, {v(VLANE)}")
    a(f"v_mul_u32_u24 v4, 124, v4")
    a(f"v_add_u32 {v(VTW)}, {v(VTW)}, v4")
    if 'touch' in ABL:
        for st in (2,3):
            a(f"s_add_u32 s45, {s(sXS)}, {128*st}")
            a(f"buffer_load_dword v122, {v(VTX)}, s[12:15], s45 offen")
            if st==2: a(f"s_mov_b32 s45, {s(sWS)}")
            else: a(f"s_add_u32 s45, {s(sWS)}, s44")
            a(f"buffer_load_dword v123, {v(VTW)}, s[16:19], s45 offen")
    a(f"v_lshlrev_b32 v4, 2, v0")
    a(f"v_add_u32 v4, {LDS_ZS}, v4")
    a(f"v_mov_b32 v5, 0")
    a(f"v_cmp_gt_u32 vcc, 256, v0")
    a("s_and_saveexec_b64 s[46:47], vcc")
    a("ds_write_b32 v4, v5")
    a("s_mov_b64 exec, s[46:47]")
    a(f"v_lshrrev_b32 v4, 2, {v(VC)}")
    a(f"v_lshlrev_b32 v4, 4, v4")
    a(f"v_and_b32 v5, 3, {v(VC)}")
    a(f"v_add_u32 v4, v4, v5")
    a(f"s_lshl_b32 s36, {s(sRH)}, 6")
    a(f"v_add_u32 v4, s36, v4")
    a(f"v_lshlrev_b32 v4, 7, v4")
    a(f"v_lshrrev_b32 v5, 1, {v(VC)}")
    a(f"v_xor_b32 v5, v5, {v(VG)}")
    a(f"v_lshl_add_u32 {v(XB)}, v5, 4, v4")
    a(f"v_bfe_u32 v4, {v(VLANE)}, 2, 2")
    a(f"v_and_b32 v5, 3, {v(VLANE)}")
    a(f"v_lshl_add_u32 v6, {v(VG)}, 3, v4")
    a(f"v_lshlrev_b32 v6, 7, v6")
    a(f"s_lshl_b32 s36, {s(sCQ)}, 13")
    a(f"s_add_u32 s36, s36, 16384")
    a(f"v_add_u32 v6, s36, v6")
    a(f"v_lshrrev_b32 v4, 1, v4")
    if 'nat' in ABL:
        a(f"v_and_b32 v7, 1, {v(VG)}")
        a(f"v_lshl_or_b32 v4, v7, 1, v4")
        for f in range(4):
            a(f"v_xor_b32 v7, {f}, v4")
            a(f"v_lshl_add_u32 {v(WB+f)}, v7, 5, v6")
            a(f"v_lshl_add_u32 {v(WB+f)}, v5, 3, {v(WB+f)}")
    else:
        a(f"v_xor_b32 v4, {s(sRH)}, v4")
        for f in range(4):
            a(f"v_lshlrev_b32 v7, 1, v5")
            if f>>1: a(f"v_or_b32 v7, 1, v7")
            a(f"v_xor_b32 v7, v7, v4")
            a(f"v_lshl_add_u32 {v(WB+f)}, v7, 4, v6")
            if f&1: a(f"v_add_u32 {v(WB+f)}, 8, {v(WB+f)}")
    for i in range(4): a(f"v_mov_b32 {v(ONE+i)}, 0x3f803f80")
    for i in range(4): a(f"v_mov_b32 {v(S1+i)}, 0")
    a(f"s_mov_b32 s48, 0xffff0000")
    for i in range(64): a(f"v_mov_b32 {v(ACC+i)}, 0")
    for i in range(8): a(f"v_mov_b32 {v(CSA+i)}, 0")
    for i in range(16): a(f"v_mov_b32 {v(XF+16+i)}, 0")
    for i in range(16): a(f"v_mov_b32 {v(WF+16+i)}, 0")
    for i in range(4): a(f"v_mov_b32 {v(116+i)}, 0")
    a(f"s_mov_b32 s49, 0"); a(f"s_mov_b32 s50, 0"); a(f"s_mov_b32 s51, {2*STAGE}")
    a(f"s_lshl_b32 s52, {s(sCQ)}, 9")
    a(f"s_add_u32 {s(sXS)}, {s(sXS)}, 256")
    if 'exit2' in ABL:
        a("s_waitcnt vmcnt(0)"); a("s_barrier"); a("s_endpgm")
    stamp(a,2)
    if 'prioA' in ABL or 'prioB' in ABL:
        lp = a.newlabel("K1_PR")
        a(f"s_cmp_eq_u32 {s(sRH)}, {0 if 'prioA' in ABL else 1}")
        a(f"s_cbranch_scc0 {lp}")
        a("s_setprio 1")
        a.label(lp)
    a(f"s_cmp_eq_u32 {s(sTY)}, {TQ}"); a("s_cbranch_scc1 K1_MAIN_N")
    a(f"s_cmp_eq_u32 {s(sTY)}, {TZ1}"); a("s_cbranch_scc1 K1_MAIN_N")
    a("s_branch K1_MAIN_T")
    XS = 112
    XQ = 22
    sST, sSLOT, sDSL = 49, 50, 51
    def read_list(sig, buf):
        L=[]
        for q in range(4):
            L.append(f"ds_read_b128 {v(XF+16*buf+4*q,4)}, {v(XA+sig)} offset:{q*512}")
        for f in range(4):
            for hh in range(2):
                L.append(f"ds_read_b64_tr_b16 {v(WF+16*buf+4*f+2*hh,2)}, {v(WA+f)} offset:{sig*4096+hh*512}")
        L.append(f"ds_read_b128 {v(XS+4*buf,4)}, {v(XQ+sig)}")
        return L
    def dma_groups():
        g=[]
        for n in range(2):
            g.append([f"s_add_u32 s46, {s(sMX)}, {s(sDSL)}", f"s_add_u32 m0, s46, {1024*n}", f"s_add_u32 s45, {s(sXS)}, {10240*n}",
                      f"buffer_load_dwordx4 {v(VDX)}, s[12:15], s45 offen lds"])
        for n in range(4):
            pre = [f"s_add_u32 s46, {s(sMW)}, {s(sDSL)}", f"s_add_u32 m0, s46, {1024*n}"]
            pre += [f"s_mov_b32 s47, {s(sWS)}"] if n==0 else [f"s_add_u32 s47, s47, s43"]
            g.append(pre + [f"buffer_load_dwordx4 {v(VDW0)}, s[16:19], s47 offen lds"])
        g[-1] += [f"s_add_u32 {s(sWS)}, {s(sWS)}, s44", f"s_add_u32 {s(sXS)}, {s(sXS)}, 128"]
        if 'touch' in ABL:
            g[-1] += [f"s_add_u32 s45, {s(sXS)}, 128", f"buffer_load_dword v122, {v(VTX)}, s[12:15], s45 offen",
                      f"s_add_u32 s45, {s(sWS)}, s44", f"buffer_load_dword v123, {v(VTW)}, s[16:19], s45 offen"]
        return g
    def compute(orient, buf, groups=None, rds=None):
        xb = XF+16*buf; wb = WF+16*buf; xs = XS+4*buf
        ops = []
        for d in range(4):
            ops += [f"v_lshlrev_b32 {v(UT+2*d)}, 16, {v(xs+d)}", f"v_and_b32 {v(UT+2*d+1)}, s48, {v(xs+d)}"]
        for e in range(8):
            ops += [f"v_add_f32 {v(S1+(e&1))}, {v(S1+(e&1))}, {v(UT+e)}", f"v_fmac_f32 {v(S1+2+(e&1))}, {v(UT+e)}, {v(UT+e)}"]
        mf = []
        for f in range(4):
            for q in range(4):
                acc = ACC + 4*(4*f+q)
                if orient == 'N': mf.append(f"v_mfma_f32_16x16x32_bf16 {v(acc,4)}, {v(wb+4*f,4)}, {v(xb+4*q,4)}, {v(acc,4)}")
                else: mf.append(f"v_mfma_f32_16x16x32_bf16 {v(acc,4)}, {v(xb+4*q,4)}, {v(wb+4*f,4)}, {v(acc,4)}")
        for ff in range(2):
            if orient == 'N': mf.append(f"v_mfma_f32_16x16x32_bf16 {v(CSA+4*ff,4)}, {v(wb+4*ff,4)}, {v(ONE,4)}, {v(CSA+4*ff,4)}")
            else: mf.append(f"v_mfma_f32_16x16x32_bf16 {v(CSA+4*ff,4)}, {v(ONE,4)}, {v(wb+4*ff,4)}, {v(CSA+4*ff,4)}")
        k = 0
        for idx,m in enumerate(mf):
            a(m)
            if rds and idx < len(rds) and 'nord' not in ABL: a(rds[idx])
            if 'nostat' not in ABL:
                for o in ops[k:k+2]: a(o)
            k += 2
            if groups and idx>=12 and idx-12 < len(groups):
                for o in groups[idx-12]: a(o)
    def mainloop(orient):
        L = a.newlabel("K1_LOOP"); L2 = a.newlabel("K1_ND"); L3 = a.newlabel("K1_NW"); L4 = a.newlabel("K1_J2")
        a.label(L)
        a(f"s_cmp_lt_u32 {s(sST)}, {9 if 'nodma' not in ABL else 0}")
        a(f"s_cbranch_scc1 {L3}")
        a("s_waitcnt vmcnt(0)")
        a.label(L3)
        a(f"s_waitcnt vmcnt({10 if 'touch' in ABL else 6}) lgkmcnt(0)")
        if 'nobar' not in ABL: a("s_barrier")
        a(f"v_add_u32 {v(XA)}, {s(sSLOT)}, {v(XB)}")
        a(f"v_xor_b32 {v(XA+1)}, 64, {v(XA)}")
        a(f"v_add_u32 {v(XQ)}, s52, {v(XA)}")
        a(f"v_xor_b32 {v(XQ+1)}, 64, {v(XQ)}")
        for f in range(4): a(f"v_add_u32 {v(WA+f)}, {s(sSLOT)}, {v(WB+f)}")
        a(f"s_cmp_lt_u32 {s(sST)}, {8 if 'nodma' not in ABL else 0}")
        a(f"s_cbranch_scc0 {L2}")
        compute(orient, 1, dma_groups(), read_list(0,0))
        a(f"s_branch {L4}")
        a.label(L2)
        compute(orient, 1, None, read_list(0,0))
        a.label(L4)
        a("s_waitcnt lgkmcnt(0)")
        compute(orient, 0, None, read_list(1,1))
        a(f"s_mov_b32 {s(sDSL)}, {s(sSLOT)}")
        a(f"s_add_u32 {s(sSLOT)}, {s(sSLOT)}, {STAGE}")
        a(f"s_cmp_eq_u32 {s(sSLOT)}, {3*STAGE}")
        a(f"s_cselect_b32 {s(sSLOT)}, 0, {s(sSLOT)}")
        a(f"s_add_u32 {s(sST)}, {s(sST)}, 1")
        a(f"s_cmp_lt_u32 {s(sST)}, 10")
        a(f"s_cbranch_scc1 {L}")
        a("s_waitcnt lgkmcnt(0)")
        compute(orient, 1)
        a.nop(8)
        stamp(a,7)
        a(f"v_add_f32 {v(S1)}, {v(S1)}, {v(S1+1)}")
        a(f"v_add_f32 {v(S1+1)}, {v(S1+2)}, {v(S1+3)}")
        a(f"v_xor_b32 v4, 16, {v(VLANE)}")
        a(f"v_lshlrev_b32 v4, 2, v4")
        a(f"v_xor_b32 v5, 32, {v(VLANE)}")
        a(f"v_lshlrev_b32 v5, 2, v5")
        for k in range(2): a(f"ds_bpermute_b32 v{6+k}, v4, {v(S1+k)}")
        a("s_waitcnt lgkmcnt(0)")
        for k in range(2): a(f"v_add_f32 {v(S1+k)}, {v(S1+k)}, v{6+k}")
        for k in range(2): a(f"ds_bpermute_b32 v{6+k}, v5, {v(S1+k)}")
        a("s_waitcnt lgkmcnt(0)")
        for k in range(2): a(f"v_add_f32 {v(S1+k)}, {v(S1+k)}, v{6+k}")
        a(f"s_mov_b32 s36, {f32bits(1.0/640)}")
        a(f"s_mov_b32 s37, {f32bits(1e-5)}")
        a(f"v_mul_f32 {v(S1)}, s36, {v(S1)}")
        a(f"v_mul_f32 {v(S1+1)}, s36, {v(S1+1)}")
        a(f"v_fma_f32 {v(S1+1)}, -{v(S1)}, {v(S1)}, {v(S1+1)}")
        a(f"v_max_f32 {v(S1+1)}, 0, {v(S1+1)}")
        a(f"v_add_f32 {v(S1+1)}, s37, {v(S1+1)}")
        a(f"v_rsq_f32 {v(S1+2)}, {v(S1+1)}")
        a.nop(1)
        a(f"v_mul_f32 {v(S1+3)}, {v(S1)}, {v(S1+2)}")
        a(f"v_lshrrev_b32 v4, 7, {v(XB)}")
        a(f"s_lshl_b32 s36, {s(sCQ)}, 2")
        a(f"v_add_u32 v4, s36, v4")
        a(f"v_lshlrev_b32 v4, 3, v4")
        a(f"v_add_u32 v4, {LDS_ST}, v4")
        a(f"ds_write_b64 v4, {v(S1+2,2)}")
        a(f"s_lshl_b32 s36, {s(sCQ)}, 8")
        a(f"s_lshl_b32 s37, {s(sRH)}, 5")
        a(f"s_add_u32 s36, s36, s37")
        a(f"s_add_u32 s36, s36, {LDS_CS}")
        if orient == 'N':
            a(f"v_lshlrev_b32 v4, 6, {v(VG)}")
            a(f"v_add_u32 v4, s36, v4")
            a(f"ds_write_b128 v4, {v(CSA,4)}")
            a(f"ds_write_b128 v4, {v(CSA+4,4)} offset:16")
        else:
            a(f"v_lshrrev_b32 v4, 2, {v(VC)}")
            a(f"v_lshlrev_b32 v4, 6, v4")
            a(f"v_and_b32 v5, 3, {v(VC)}")
            a(f"v_lshl_add_u32 v4, v5, 2, v4")
            a(f"v_add_u32 v4, s36, v4")
            a(f"ds_write_b32 v4, {v(CSA)}")
            a(f"ds_write_b32 v4, {v(CSA+4)} offset:16")
        a("s_waitcnt lgkmcnt(0)")
        a("s_barrier")
        if 'noepi' in ABL: a("s_endpgm")
        stamp(a,4)
    sL, sEPS, sGB = 40, 41, 42
    VGA = 4
    def consts():
        a(f"s_mov_b32 {s(sL)}, {f32bits(LOG2E)}")
        a(f"s_mov_b32 {s(sEPS)}, {f32bits(1e-6)}")
        a(f"s_mov_b32 {s(sGB)}, {f32bits(GB)}")
        a(f"v_mov_b32 {v(VGA)}, {f32bits(GA)}")
    TMP = 160; PK = 36; SR = 112; CSR = 144
    a.label("K1_MAIN_N")
    mainloop('N')
    consts()
    a(f"v_lshrrev_b32 v5, 7, {v(XB)}")
    a(f"v_lshlrev_b32 v6, 3, v5")
    a(f"v_add_u32 v10, {LDS_ST}, v6")
    a(f"s_lshl_b32 s36, {s(sCQ)}, 8")
    a(f"s_add_u32 s36, s36, {LDS_CS}")
    a(f"v_lshlrev_b32 v6, 6, {v(VG)}")
    a(f"v_add_u32 v6, s36, v6")
    a(f"s_lshl_b32 s37, {s(sRH)}, 5")
    a(f"v_add_u32 v7, s37, v6")
    a(f"v_xor_b32 v8, 32, v7")
    for f in range(4):
        a(f"ds_read_b128 {v(CSR+4*f,4)}, {'v7' if f<2 else 'v8'} offset:{16*(f&1)}")
    a(f"s_cmp_eq_u32 {s(sTY)}, {TQ}")
    a(f"s_movk_i32 s43, 1536")
    a(f"s_cselect_b32 s43, 1280, s43")
    a(f"s_cselect_b32 s44, {WS_PQ}, {WS_Z1}")
    a(f"s_lshl_b32 s45, {s(sIX)}, 7")
    a(f"s_add_u32 s44, s44, s45")
    a(f"s_lshl_b32 s45, {s(sRB)}, 7")
    a(f"v_add_u32 v5, s45, v5")
    a(f"v_mul_lo_u32 v5, v5, s43")
    a(f"v_lshl_add_u32 v5, {v(VG)}, 5, v5")
    a(f"s_lshl_b32 s37, {s(sRH)}, 4")
    a(f"v_add_u32 v5, s37, v5")
    a(f"v_xor_b32 v9, 16, v5")
    a(f"s_lshl_b32 s43, s43, 2")
    a(f"s_mov_b32 s46, 0")
    a(f"s_cmp_eq_u32 {s(sTY)}, {TQ}")
    a("s_cbranch_scc0 K1_EPI_Z1")
    TT = 176
    def epiN(kind):
        L = a.newlabel("K1_EN")
        a.label(L)
        a(f"ds_read_b64 {v(SR,2)}, v10")
        a(f"s_set_gpr_idx_on s46, 0x1")
        for f in range(4):
            for r in range(4): a(f"v_mov_b32 {v(TT+4*f+r)}, {v(ACC+16*f+r)}")
        a("s_set_gpr_idx_off")
        a(f"v_add_u32 v10, 32, v10")
        a("s_waitcnt lgkmcnt(0)")
        for f in range(4):
            xs = [TT+4*f+r for r in range(4)]
            ts = [TMP+4*f+r for r in range(4)]
            for r in range(4): a(f"v_mul_f32 {v(ts[r])}, {v(SR+1)}, {v(CSR+4*f+r)}")
            for r in range(4): a(f"v_fma_f32 {v(xs[r])}, {v(xs[r])}, {v(SR)}, -{v(ts[r])}")
            if kind=='q': phi4(a, xs, ts, sL, sEPS)
            else: gelu4(a, xs, ts, sGB, VGA)
            a(f"v_cvt_pk_bf16_f32 {v(PK+2*f)}, {v(xs[0])}, {v(xs[1])}")
            a(f"v_cvt_pk_bf16_f32 {v(PK+2*f+1)}, {v(xs[2])}, {v(xs[3])}")
        a(f"buffer_store_dwordx4 {v(PK,4)}, v5, s[20:23], s44 offen")
        a(f"buffer_store_dwordx4 {v(PK+4,4)}, v9, s[20:23], s44 offen")
        a(f"s_add_u32 s44, s44, s43")
        a(f"s_add_u32 s46, s46, 4")
        a(f"s_cmp_lt_u32 s46, 16")
        a(f"s_cbranch_scc1 {L}")
    epiN('q')
    stamp(a,5)
    a("s_waitcnt vmcnt(0)") if STAMPS else None
    stamp(a,8); stamp_rt(a,9)
    a("s_waitcnt lgkmcnt(0)") if STAMPS else None
    stamp_flush(a, 10, 6*32, sW, 0)
    trace_end(a,0,sW)
    a("s_endpgm")
    a.label("K1_EPI_Z1")
    epiN('z1')
    trace_end(a,0,sW)
    a("s_endpgm")
    a.label("K1_MAIN_T")
    mainloop('T')
    consts()
    a(f"s_lshl_b32 s36, {s(sRH)}, 9")
    a(f"s_add_u32 s36, s36, {LDS_ST}")
    a(f"v_lshlrev_b32 v6, 7, {v(VG)}")
    a(f"v_add_u32 v6, s36, v6")
    for k in range(8):
        a(f"ds_read_b128 {v(SR+4*k,4)}, v6 offset:{16*k}")
    a(f"v_lshrrev_b32 v7, 2, {v(VC)}")
    a(f"v_lshlrev_b32 v7, 4, v7")
    a(f"v_and_or_b32 v7, {v(VC)}, 3, v7")
    a(f"s_lshl_b32 s36, {s(sCQ)}, 8")
    a(f"s_add_u32 s36, s36, {LDS_CS}")
    a(f"v_lshlrev_b32 v6, 2, v7")
    a(f"v_add_u32 v6, s36, v6")
    a(f"v_mov_b32 v12, v6")
    a(f"s_mov_b32 s46, 0")
    a(f"s_mov_b32 s47, 0")
    a(f"s_lshl_b32 s57, {s(sRH)}, 1")
    TT = 176
    def topT():
        a(f"s_xor_b32 s56, s47, s57")
        a(f"s_lshl_b32 s37, s56, 4")
        a(f"v_add_u32 v13, s37, v12")
        a(f"ds_read_b32 {v(CSR)}, v13")
        a(f"s_set_gpr_idx_on s46, 0x1")
        for i in range(16): a(f"v_mov_b32 {v(TT+i)}, {v(ACC+i)}")
        a("s_set_gpr_idx_off")
        a("s_waitcnt lgkmcnt(0)")
    def normT(q):
        xs = [TT+4*q+r for r in range(4)]
        ts = [TMP+4*q+r for r in range(4)]
        for r in range(4): a(f"v_mul_f32 {v(ts[r])}, {v(SR+2*(4*q+r)+1)}, {v(CSR)}")
        for r in range(4): a(f"v_fma_f32 {v(xs[r])}, {v(xs[r])}, {v(SR+2*(4*q+r))}, -{v(ts[r])}")
        return xs, ts
    def packT():
        for q in range(4):
            for h in range(2):
                a(f"v_cvt_pk_bf16_f32 {v(PK+2*q+h)}, {v(TT+4*q+2*h)}, {v(TT+4*q+2*h+1)}")
    def botT(L):
        a(f"s_add_u32 s46, s46, 16")
        a(f"s_add_u32 s47, s47, 1")
        a(f"s_cmp_lt_u32 s47, 4")
        a(f"s_cbranch_scc1 {L}")
    a(f"s_cmp_eq_u32 {s(sTY)}, {TZ2}")
    a("s_cbranch_scc1 K1_EPI_Z2")
    a(f"s_mul_i32 s43, {s(sW)}, {64*KVPITCH}")
    a(f"v_mul_u32_u24 v5, {KVPITCH}, v7")
    a(f"v_lshl_add_u32 v5, {v(VG)}, 5, v5")
    a(f"v_add_u32 v5, s43, v5")
    a(f"s_cmp_eq_u32 {s(sTY)}, {TK}")
    a("s_cbranch_scc0 K1_EPI_V")
    def epiKV(kind):
        L = a.newlabel("K1_EK")
        a.label(L)
        topT()
        for q in range(4):
            xs, ts = normT(q)
            if kind=='k': phi4(a, xs, ts, sL, sEPS)
        packT()
        a(f"s_mul_i32 s37, s56, {4*KVPITCH}")
        a(f"v_add_u32 v8, s37, v5")
        a(f"ds_write_b128 v8, {v(PK,4)}")
        a(f"ds_write_b128 v8, {v(PK+4,4)} offset:16")
        botT(L)
    epiKV('k')
    a("s_branch K1_KVJOIN")
    a.label("K1_EPI_V")
    epiKV('v')
    a.label("K1_KVJOIN")
    a("s_waitcnt lgkmcnt(0)")
    a("s_barrier")
    a(f"s_cmp_ge_u32 {s(sW)}, 6")
    a("s_cbranch_scc1 K1_KVDONE")
    a(f"s_lshr_b32 s57, {s(sW)}, 1")
    a(f"s_mul_i32 s44, {s(sIX)}, 3")
    a(f"s_add_u32 s44, s44, s57")
    a(f"s_cmp_ge_u32 s44, 32")
    a("s_cbranch_scc1 K1_KVDONE")
    a(f"s_and_b32 s43, {s(sW)}, 1")
    a(f"s_mul_i32 s43, s43, {64*KVPITCH}")
    a(f"s_mul_i32 s45, s57, {20*KVPITCH}")
    a(f"s_add_u32 s43, s43, s45")
    a(f"v_mul_u32_u24 v5, {KVPITCH}, {v(VC)}")
    a(f"v_lshl_add_u32 v5, {v(VG)}, 4, v5")
    a(f"v_add_u32 v5, s43, v5")
    B = 40
    for u in range(4):
        for k in range(4):
            off = 16*(k&1)*KVPITCH + (2*64*KVPITCH if k>=2 else 0) + 64*(u&1) + (4*64*KVPITCH if u>=2 else 0)
            a(f"ds_read_b128 {v(B+16*u+4*k,4)}, v5 offset:{off}")
    a(f"v_mul_u32_u24 v6, 80, {v(VC)}")
    a(f"v_lshl_add_u32 v6, {v(VG)}, 4, v6")
    a(f"v_cmp_gt_u32 s[46:47], 4, {v(VC)}")
    a(f"v_cmp_eq_u32 s[48:49], 0, {v(VG)}")
    a(f"v_cmp_eq_u32 s[50:51], 0, {v(VC)}")
    a(f"s_and_b64 s[52:53], s[46:47], s[48:49]")
    a(f"s_and_b64 s[54:55], s[50:51], s[48:49]")
    a(f"s_lshl_b32 s45, {s(sRB)}, 5")
    a(f"s_add_u32 s45, s45, s44")
    a(f"s_mul_i32 s45, s45, 1680")
    a(f"s_add_u32 s45, s45, {WS_KVP}")
    D = 112
    for u in range(4):
        a(f"s_waitcnt lgkmcnt({4*(3-u)})")
        b = B+16*u
        pairs = [(b, b+8),(b, b+12),(b+4, b+8),(b+4, b+12),(b, ONE),(b+4, ONE)]
        for ti,(A,Bq) in enumerate(pairs):
            c = "0" if u==0 else v(D+4*ti,4)
            a(f"v_mfma_f32_16x16x32_bf16 {v(D+4*ti,4)}, {v(A,4)}, {v(Bq,4)}, {c}")
    a.nop(8)
    specs = [(None, 0), ("s[46:47]", 16*20), ("s[48:49]", 16), ("s[52:53]", 16*20+16), ("s[50:51]", 400), ("s[54:55]", 416)]
    for ti,(m,item0) in enumerate(specs):
        if m: a(f"s_mov_b64 exec, {m}")
        a(f"buffer_store_dwordx4 {v(D+4*ti,4)}, v6, s[20:23], s45 offen offset:{item0*4}")
    a("s_mov_b64 exec, -1")
    a.label("K1_KVDONE")
    trace_end(a,0,sW)
    a("s_endpgm")
    a.label("K1_EPI_Z2")
    a(f"s_lshl_b32 s44, {s(sRB)}, 2")
    a(f"s_lshl_b32 s45, {s(sRH)}, 1")
    a(f"s_add_u32 s44, s44, s45")
    a(f"v_lshrrev_b32 v9, 1, {v(VG)}")
    a(f"v_add_u32 v9, s44, v9")
    a(f"v_and_b32 v10, 1, {v(VG)}")
    a(f"v_lshlrev_b32 v10, 9, v10")
    a(f"v_and_b32 v11, 3, {v(VC)}")
    a(f"v_lshl_add_u32 v10, v11, 4, v10")
    a(f"s_lshl_b32 s44, {s(sIX)}, 4")
    a(f"v_lshrrev_b32 v11, 2, {v(VC)}")
    a(f"v_lshlrev_b32 v11, 2, v11")
    a(f"v_add_u32 v11, s44, v11")
    a(f"s_mov_b32 s45, {WS_Z2F}")
    ST0 = 56
    for i in range(32): a(f"v_mov_b32 {v(ST0+i)}, 0")
    L = a.newlabel("K1_EZ")
    a.label(L)
    topT()
    for q in range(4):
        xs, ts = normT(q)
        gelu4(a, xs, ts, sGB, VGA)
    a(f"v_add_u32 v5, s56, v11")
    a(f"v_mul_u32_u24 v6, 2731, v5")
    a(f"v_lshrrev_b32 v6, 16, v6")
    a(f"v_mul_u32_u24 v7, 24, v6")
    a(f"v_sub_u32 v5, v5, v7")
    a(f"v_mul_u32_u24 v7, 43, v5")
    a(f"v_lshrrev_b32 v7, 8, v7")
    a(f"v_mul_u32_u24 v8, 6, v7")
    a(f"v_sub_u32 v5, v5, v8")
    a(f"v_lshl_add_u32 v6, v6, 6, v9")
    a(f"v_mul_u32_u24 v6, 6, v6")
    a(f"v_add_u32 v6, v6, v5")
    a(f"v_lshl_add_u32 v6, v6, 10, v10")
    a(f"v_lshl_add_u32 v6, v7, 6, v6")
    packT()
    a(f"buffer_store_dwordx4 {v(PK,4)}, v6, s[20:23], s45 offen")
    a(f"buffer_store_dwordx4 {v(PK+4,4)}, v6, s[20:23], s45 offen offset:256")
    for i in range(16):
        a(f"v_add_f32 {v(ST0+2*i)}, {v(ST0+2*i)}, {v(TT+i)}")
        a(f"v_fmac_f32 {v(ST0+2*i+1)}, {v(TT+i)}, {v(TT+i)}")
    botT(L)
    dpp_red16(a, list(range(ST0, ST0+32)))
    a(f"s_lshl_b32 s36, {s(sRH)}, 9")
    a(f"s_add_u32 s36, s36, {LDS_ZS}")
    a(f"v_lshlrev_b32 v5, 7, {v(VG)}")
    a(f"v_add_u32 v5, s36, v5")
    a(f"v_cmp_eq_u32 vcc, 0, {v(VC)}")
    a("s_and_saveexec_b64 s[46:47], vcc")
    for k in range(32):
        a(f"ds_add_f32 v5, {v(ST0+k)} offset:{4*k}")
    a("s_mov_b64 exec, s[46:47]")
    a("s_waitcnt lgkmcnt(0)")
    a("s_barrier")
    a(f"s_cmp_lg_u32 {s(sW)}, 0")
    a("s_cbranch_scc1 K1_Z2DONE")
    a(f"v_lshlrev_b32 v5, 4, {v(VLANE)}")
    a(f"v_add_u32 v6, {LDS_ZS}, v5")
    a(f"ds_read_b128 v[8:11], v6")
    a(f"s_lshr_b32 s43, {s(sIX)}, 2")
    a(f"s_lshl_b32 s43, s43, 14")
    a(f"s_add_u32 s43, s43, {WS_ST}")
    a(f"s_lshl_b32 s44, {s(sRB)}, 10")
    a(f"s_add_u32 s43, s43, s44")
    a("s_waitcnt lgkmcnt(0)")
    a(f"buffer_store_dwordx4 v[8:11], v5, s[20:23], s43 offen")
    a.label("K1_Z2DONE")
    trace_end(a,0,sW)
    a("s_endpgm")
    a.label("K1_PF")
    a(f"s_load_dwordx2 s[4:5], s[0:1], {KA_WSP}")
    a(f"s_load_dwordx2 s[6:7], s[0:1], {KA_WO}")
    a(f"s_load_dwordx2 s[8:9], s[0:1], {KA_WOUT}")
    a(f"s_load_dwordx2 s[28:29], s[0:1], {KA_X}")
    a(f"s_load_dwordx2 s[30:31], s[0:1], {KA_WQKV}")
    a(f"s_load_dwordx2 s[32:33], s[0:1], {KA_WIN}")
    a("s_sub_u32 s24, s2, 224")
    a("s_and_b32 s25, s24, 7")
    a("s_lshr_b32 s26, s24, 3")
    a("s_lshl_b32 s27, s26, 9")
    a("v_add_u32 v2, s27, v0")
    a("v_lshlrev_b32 v2, 7, v2")
    a("s_waitcnt lgkmcnt(0)")
    srd(a, 36, 28, 2048*1280)
    srd(a, 40, 30, 640*3840)
    srd(a, 44, 32, 640*3072)
    if 'warm' in ABL:
        a("s_and_b32 s27, s25, 3")
        a("s_mul_i32 s27, s27, 655360")
        for i in range(3):
            a(f"buffer_load_dword v{8+i}, v2, s[36:39], s27 offen")
            a("s_add_u32 s27, s27, 262144")
        a("s_cmp_lt_u32 s25, 4")
        a("s_cbranch_scc0 K1_PFB")
        a("s_mov_b32 s27, 0")
        for i in range(10):
            a(f"buffer_load_dword v{12+i}, v2, s[40:43], s27 offen")
            a("s_add_u32 s27, s27, 262144")
        a("s_branch K1_PFC")
        a.label("K1_PFB")
        a("s_mov_b32 s27, 0")
        for i in range(8):
            a(f"buffer_load_dword v{12+i}, v2, s[44:47], s27 offen")
            a("s_add_u32 s27, s27, 262144")
        a("s_lshl_b32 s27, s26, 9")
        a("v_add_u32 v3, s27, v0")
        for i in range(2):
            a("v_lshrrev_b32 v4, 2, v3")
            a("v_mul_u32_u24 v4, 3840, v4")
            a("v_and_b32 v5, 3, v3")
            a("v_lshl_add_u32 v4, v5, 7, v4")
            a(f"buffer_load_dword v{22+i}, v4, s[40:43], 0 offen offset:512")
            a("v_add_u32 v3, 2048, v3")
        a.label("K1_PFC")
        a("s_waitcnt vmcnt(0)")
    a("s_lshl_b32 s25, s25, 2")
    a("s_add_u32 s25, s25, s26")
    a("s_lshl_b32 s25, s25, 18")
    a("v_lshlrev_b32 v1, 4, v0")
    srd(a, 12, 4, 2048*4096)
    srd(a, 16, 6, 640*1280)
    srd(a, 20, 8, 768*1280)
    for i in range(32):
        a(f"buffer_load_dwordx4 {v(8+4*(i%16),4)}, v1, s[12:15], s25 offen")
        a("s_add_u32 s25, s25, 8192")
        if i%2==1: a("s_waitcnt vmcnt(0)")
    a("s_mul_i32 s25, s24, 25600")
    for i in range(4):
        a(f"buffer_load_dwordx4 {v(72+4*i,4)}, v1, s[16:19], s25 offen")
        a("s_add_u32 s25, s25, 8192")
    a("s_mul_i32 s25, s24, 30720")
    for i in range(4):
        a(f"buffer_load_dwordx4 {v(88+4*i,4)}, v1, s[20:23], s25 offen")
        a("s_add_u32 s25, s25, 8192")
    a("s_waitcnt vmcnt(0)")
    a.label("K1_END")
    a("s_endpgm")
```
